```python
import torch

def _softmax(x, axis=-1):
    return torch.softmax(x, dim=axis)

def _gelu(x):
    return torch.nn.functional.gelu(x, approximate='tanh')

def _silu(x):
    return torch.nn.functional.silu(x)

def _sigmoid(x):
    return torch.sigmoid(x)

def _layernorm(x, axis=-1, eps=1e-05):
    m = x.mean(dim=axis, keepdim=True)
    v = x.var(dim=axis, keepdim=True, unbiased=False)
    return (x - m) / torch.sqrt(v + eps)

def _scatter_add(tgt, idx, src, axis=0):
    return tgt.clone().index_add_(axis, idx, src)

def _segment_sum(src, seg, n):
    out = torch.zeros((n,) + src.shape[1:], dtype=src.dtype)
    return out.index_add_(0, seg, src)

def _pad(x, pw):
    flat = tuple((v for pair in reversed(pw) for v in pair))
    return torch.nn.functional.pad(x, flat)
kernel_name = 'adaLN_cond__memory_aug_recurrent_mem_tr__moe_arch_mod__prompt'

def setup_inputs():

    _w = lambda a: (lambda t: t.to(torch.bfloat16) if t.is_floating_point() else t)(torch.as_tensor(a))

    def _A_setup():
        B, S, Dm = (1, 2048, 448)
        H, Dh = (16, 256)
        M, seg = (8, 32)
        seg = min(seg, S)
        S = S // seg * seg
        return {'x': _w((lambda *s: torch.randn(*s, dtype=torch.bfloat16) * 0.05)(B, S, Dm)), 'mem0': _w((lambda *s: torch.randn(*s, dtype=torch.bfloat16) * 0.4)(B, M, Dm)), 'Wq': _w((lambda *s: torch.randn(*s, dtype=torch.bfloat16) * 3.2)(Dm, H, Dh) * Dm ** (-0.5)), 'Wk': _w((lambda *s: torch.randn(*s, dtype=torch.bfloat16) * 3.2)(Dm, H, Dh) * Dm ** (-0.5)), 'Wv': _w((lambda *s: torch.randn(*s, dtype=torch.bfloat16) * 0.4)(Dm, H, Dh) * Dm ** (-0.5)), 'Wo': _w((lambda *s: torch.randn(*s, dtype=torch.bfloat16) * 0.4)(H, Dh, Dm) * (H * Dh) ** (-0.5)), 'seg_len': seg}
    _A_in = _A_setup()

    def _B_setup():
        B, S, D, F, C = (1, 2048, 448, 1792, 2)
        return {'x': _w((lambda *s: torch.randn(*s, dtype=torch.bfloat16) * 0.05)(B, S, D)), 'w_r': _w((lambda *s: torch.randn(*s, dtype=torch.bfloat16) * 3.2)(D)), 'w_gate': _w((lambda *s: torch.randn(*s, dtype=torch.bfloat16) * 0.1)(D, F)), 'w_up': _w((lambda *s: torch.randn(*s, dtype=torch.bfloat16) * 0.1)(D, F)), 'w_down': _w((lambda *s: torch.randn(*s, dtype=torch.bfloat16) * 0.1)(F, D))}
    _B_in = _B_setup()
    return {'A_x': _A_in['x'], 'A_mem0': _A_in['mem0'], 'A_Wq': _A_in['Wq'], 'A_Wk': _A_in['Wk'], 'A_Wv': _A_in['Wv'], 'A_Wo': _A_in['Wo'], 'A_seg_len': _A_in['seg_len'], 'B_x': _B_in['x'], 'B_w_r': _B_in['w_r'], 'B_w_gate': _B_in['w_gate'], 'B_w_up': _B_in['w_up'], 'B_w_down': _B_in['w_down'], 'c': _w((lambda *s: torch.randn(*s, dtype=torch.bfloat16) * 0.1)(1, 448) * 8.0), 'w_mod': _w((lambda *s: torch.randn(*s, dtype=torch.bfloat16) * 0.1)(448, 6 * 448) * 448 ** (-0.5) * 8.0)}

def reference(A_x, A_mem0, A_Wq, A_Wk, A_Wv, A_Wo, A_seg_len, B_x, B_w_r, B_w_gate, B_w_up, B_w_down, c, w_mod):

    def _A_ref(x, mem0, Wq, Wk, Wv, Wo, seg_len):
        B, S, Dm = x.shape
        H, Dh = (Wq.shape[1], Wq.shape[2])
        M = mem0.shape[1]
        scale = Dh ** (-0.5)
        n_seg = S // seg_len
        L = M + seg_len
        idx = torch.arange(L)
        mask = (idx[:, None] < M) | (idx[:, None] >= idx[None, :])
        mem = mem0
        outs = []
        for s in range(n_seg):
            xs = x[:, s * seg_len:(s + 1) * seg_len, :].clone()
            h = torch.concatenate([mem, xs], axis=1)
            q = torch.einsum('btd,dhe->bhte', h, Wq)
            k = torch.einsum('btd,dhe->bhte', h, Wk)
            v = torch.einsum('btd,dhe->bhte', h, Wv)
            scores = torch.einsum('bhqe,bhke->bhqk', q, k) * scale
            scores = torch.where(mask[None, None], scores, -1000000000.0)
            p = _softmax(scores, axis=-1)
            o = torch.einsum('bhqk,bhke->bhqe', p, v)
            o = torch.einsum('bhte,hed->btd', o, Wo)
            mem = o[:, :M, :].clone()
            outs.append(o[:, M:, :])
        return torch.concatenate(outs, axis=1)

    def _B_ref(x, w_r, w_gate, w_up, w_down):
        B, S, D = x.shape
        C = 2
        r = x @ w_r
        idx = torch.argsort(-r, axis=-1)[:, :C]
        idx_e = (lambda x, n, axis: torch.repeat_interleave(x, n, dim=axis))(idx.reshape(B, C, 1), D, axis=2)
        x_sel = (lambda x, i, axis: torch.take_along_dim(x, i, dim=axis))(x, idx_e, axis=1)
        g = _silu(x_sel @ w_gate)
        u = x_sel @ w_up
        y = g * u @ w_down
        r_sel = _sigmoid((lambda x, i, axis: torch.take_along_dim(x, i, dim=axis))(r, idx, axis=1))
        y = y * r_sel.reshape(B, C, 1)
        b_off = (torch.arange(B) * S).reshape(B, 1)
        flat_idx = (idx + b_off).reshape(B * C)
        zero = (x * 0.0).reshape(B * S, D)
        upd = _scatter_add(zero, flat_idx, y.reshape(B * C, D), axis=0)
        return x + upd.reshape(B, S, D)
    x = A_x
    mod = (_silu(c) @ w_mod).reshape(c.shape[0], 6, 1, -1)
    sa, ca, ga, sb, cb, gb = (mod[:, 0].clone(), mod[:, 1].clone(), mod[:, 2].clone(), mod[:, 3].clone(), mod[:, 4].clone(), mod[:, 5].clone())
    h = _layernorm(x, axis=-1) * (1 + ca) + sa
    x = x + ga * _A_ref(h, A_mem0, A_Wq, A_Wk, A_Wv, A_Wo, A_seg_len)
    h = _layernorm(x, axis=-1) * (1 + cb) + sb
    x = x + gb * _B_ref(h, B_w_r, B_w_gate, B_w_up, B_w_down)
    return x
```

```python
import re
class Asm:
    def __init__(self):
        self.lines = []
        self.uid = 0
        self.n = 0
    def __call__(self, s=""):
        for l in s.split("\n"):
            t = l.strip()
            if not t: continue
            if t.endswith(":") or t.startswith(".") or t.startswith(";"):
                self.lines.append(t if t.endswith(":") else "    " + t)
                continue
            self.lines.append("    " + t)
            m = re.match(r"s_nop\s+(\d+)", t)
            self.n += (int(m.group(1)) + 1) if m else 1
    def c(self, s):
        self.lines.append("    ; " + s)
    def label(self, name):
        self.lines.append(name + ":")
    def newlabel(self, base="L"):
        self.uid += 1
        return "%s_%d" % (base, self.uid)
    def mark(self):
        return self.n
    def gap(self, mark, states):
        have = self.n - mark
        need = states - have
        while need > 0:
            k = min(need, 16)
            self("s_nop %d" % (k - 1))
            need -= k
    def text(self):
        return "\n".join(self.lines) + "\n"

def v(a, n=1):
    return "v%d" % a if n == 1 else "v[%d:%d]" % (a, a + n - 1)
def a(i, n=1):
    return "a%d" % i if n == 1 else "a[%d:%d]" % (i, i + n - 1)
def s(i, n=1):
    return "s%d" % i if n == 1 else "s[%d:%d]" % (i, i + n - 1)

class Alloc:
    def __init__(self, start, end):
        self.p = start; self.end = end; self.names = {}
    def __call__(self, name, n=1, align=1):
        self.p = (self.p + align - 1) // align * align
        r = self.p
        self.p += n
        assert self.p <= self.end, "out of registers at %s (%d > %d)" % (name, self.p, self.end)
        self.names[name] = (r, n)
        return r
```

```python
from asmlib import *
import layout as L
from gen_pre import *

def mfma32(asm, d, A, B, first=False):
    asm("v_mfma_f32_32x32x16_bf16 %s, %s, %s, %s" % (v(d, 16), A, B, "0" if first else v(d, 16)))

PXS = 40960

def emit_etask(asm, sSeg, sH):
    asm("v_and_b32 v1, 63, v0")
    asm("v_lshlrev_b32 v2, 4, v1")
    asm("s_lshl_b32 s16, %s, 4" % s(sSeg))
    asm("s_add_u32 s16, s16, %s" % s(sH))
    asm("s_mul_i32 s17, s16, %d" % (28 * 1024))
    asm("s_add_u32 s17, s17, %d" % L.QF)
    for k in range(28):
        asm("buffer_load_dwordx4 %s, v2, %s, s17 offen offset:%d sc1" % (a(4 * k, 4), WS, (k % 4) * 1024))
        if k % 4 == 3: asm("s_add_u32 s17, s17, 4096")
    asm("s_lshl_b32 s17, s16, 11")
    asm("s_add_u32 s17, s17, %d" % L.SX)
    asm("buffer_load_dwordx4 v[8:11], v2, %s, s17 offen sc1" % WS)
    asm("buffer_load_dwordx4 v[12:15], v2, %s, s17 offen offset:1024 sc1" % WS)
    asm("v_lshrrev_b32 v3, 5, v1")
    asm("v_lshlrev_b32 v4, 7, v3")
    asm("v_and_b32 v5, 7, v1")
    asm("v_lshl_add_u32 v4, v5, 4, v4")
    asm("s_mul_i32 s17, %s, 7168" % s(sSeg))
    asm("s_add_u32 s17, s17, %d" % L.MX)
    asm("s_waitcnt vmcnt(30)")
    for k in range(28):
        if k == 16: asm("s_add_u32 s17, s17, 4096")
        asm("buffer_load_dwordx4 %s, v4, %s, s17 offen offset:%d sc1" % (v(48 + 4 * k, 4), WS, (k % 16) * 256))
    for k in range(28):
        asm("s_waitcnt vmcnt(%d)" % (27 - k))
        mfma32(asm, 16, v(48 + 4 * k, 4), a(4 * k, 4), first=(k == 0))
    for i in range(8):
        asm("v_lshlrev_b32 %s, 16, %s" % (v(32 + 2 * i), v(8 + i)))
        asm("v_and_b32 %s, 0xffff0000, %s" % (v(33 + 2 * i), v(8 + i)))
    asm("v_and_b32 v5, 31, v1")
    asm("v_lshlrev_b32 v6, 2, v3")
    asm("v_sub_u32 v5, v5, v6")
    asm("v_mov_b32 v6, 0xff800000")
    for r in range(16):
        asm("v_cmp_le_i32 vcc, %d, v5" % (8 * (r >> 2) + (r & 3)))
        asm("s_nop 1")
        asm("v_cndmask_b32 %s, v6, %s, vcc" % (v(32 + r), v(32 + r)))
    asm("s_nop 7")
    bf_round2(asm, 16, 17, 7); bf_round2(asm, 18, 19, 7)
    asm("v_max3_f32 v7, v16, v17, v18")
    asm("v_max3_f32 v7, v7, v19, v32")
    for r in range(1, 15, 2): asm("v_max3_f32 v7, v7, %s, %s" % (v(32 + r), v(33 + r)))
    asm("v_max_f32 v7, v7, v47")
    asm("v_mov_b32 v8, v7")
    asm("s_nop 1")
    asm("v_permlane32_swap_b32 v7, v8")
    asm("s_nop 0")
    asm("v_max_f32 v7, v7, v8")
    asm("s_mov_b32 s18, 0x3db8aa3b")
    asm("v_mul_f32 v7, s18, v7")
    regs = [16, 17, 18, 19] + list(range(32, 48))
    for r in regs: asm("v_fma_f32 %s, %s, s18, -v7" % (v(r), v(r)))
    for r in regs: asm("v_exp_f32 %s, %s" % (v(r), v(r)))
    asm("s_nop 0")
    asm("v_add_f32 v8, v16, v17")
    for r in regs[2:]: asm("v_add_f32 v8, v8, %s" % v(r))
    asm("v_mov_b32 v9, v8")
    asm("s_nop 1")
    asm("v_permlane32_swap_b32 v8, v9")
    asm("s_nop 0")
    asm("v_add_f32 v8, v8, v9")
    asm("v_rcp_f32 v8, v8")
    asm("s_nop 0")
    for r in regs: asm("v_mul_f32 %s, %s, v8" % (v(r), v(r)))
    for i in range(8): asm("v_cvt_pk_bf16_f32 %s, %s, %s" % (v(8 + i), v(32 + 2 * i), v(33 + 2 * i)))
    asm("v_cvt_pk_bf16_f32 v20, v16, v17"); asm("v_cvt_pk_bf16_f32 v21, v18, v19")
    asm("s_mul_i32 s17, %s, %d" % (s(sSeg), PXS))
    asm("s_add_u32 s17, s17, %d" % L.PX)
    asm("s_lshl_b32 s18, %s, 11" % s(sH))
    asm("s_add_u32 s18, s18, s17")
    asm("buffer_store_dwordx4 v[8:11], v2, %s, s18 offen sc1" % WS)
    asm("buffer_store_dwordx4 v[12:15], v2, %s, s18 offen offset:1024 sc1" % WS)
    asm("s_lshr_b32 s18, %s, 1" % s(sH))
    asm("s_lshl_b32 s18, s18, 10")
    asm("s_and_b32 s19, %s, 1" % s(sH))
    asm("s_lshl_b32 s19, s19, 3")
    asm("s_add_u32 s18, s18, s19")
    asm("s_add_u32 s18, s18, s17")
    asm("s_add_u32 s18, s18, 32768")
    asm("buffer_store_dwordx2 v[20:21], v2, %s, s18 offen sc1" % WS)

O_P = 0
O_A = 40960
O_AS = 452 * 4

def emit_otask(asm, sSeg):
    sW = 26
    asm("v_and_b32 v1, 63, v0")
    asm("v_lshrrev_b32 v2, 6, v0")
    asm("s_nop 0")
    asm("v_readfirstlane_b32 %s, v2" % s(sW))
    asm("v_lshlrev_b32 v2, 4, v1")
    asm("s_barrier")
    asm("s_mul_i32 s16, %s, %d" % (s(sSeg), PXS))
    asm("s_add_u32 s16, s16, %d" % L.PX)
    asm("s_mul_i32 s17, %s, 10240" % s(sW))
    asm("s_add_u32 s16, s16, s17")
    for p in range(10):
        asm("s_add_u32 m0, s17, %d" % (O_P + p * 1024))
        asm("s_add_u32 s18, s16, %d" % (p * 1024))
        asm("buffer_load_dwordx4 v2, %s, s18 offen sc1 lds" % WS)
    asm("v_bfe_u32 v3, v1, 4, 1")
    asm("v_lshrrev_b32 v4, 5, v1")
    asm("v_and_b32 v5, 15, v1")
    asm("v_lshlrev_b32 v6, 10, v3")
    asm("v_lshl_add_u32 v6, v4, 8, v6")
    asm("v_lshl_add_u32 v6, v5, 4, v6")
    asm("s_waitcnt vmcnt(0)")
    asm("s_barrier")
    for k in range(40):
        asm("ds_read_b128 %s, v2 offset:%d" % (v(96 + 4 * k, 4), O_P + k * 1024))
        if k % 8 == 7: asm("s_waitcnt lgkmcnt(4)")
    asm("s_waitcnt lgkmcnt(0)")
    asm("s_mul_i32 s20, %s, %d" % (s(sSeg), 16 * 28 * 1024))
    asm("s_add_u32 s20, s20, %d" % L.ZX)
    asm("s_mul_i32 s21, %s, %d" % (s(sSeg), 14 * 8 * 1024))
    asm("s_add_u32 s21, s21, %d" % L.WX)
    asm("s_mov_b32 s22, %s" % s(sW))
    lp = asm.newlabel("oft")
    asm.label(lp)
    NB = 12
    def bload(k):
        d = a(4 * (k % NB), 4)
        if k < 32:
            h, qq = k // 2, k % 2
            asm("s_add_u32 s18, s23, %d" % (h * 28 * 1024))
            asm("buffer_load_dwordx4 %s, v6, %s, s18 offen offset:%d sc1" % (d, WS, qq * 512))
        else:
            p = k - 32
            asm("s_add_u32 s18, s24, %d" % ((p >> 1) * 2048))
            asm("buffer_load_dwordx4 %s, v6, %s, s18 offen offset:%d sc1" % (d, WS, (p & 1) * 512))
    asm("s_lshl_b32 s23, s22, 11")
    asm("s_add_u32 s23, s23, s20")
    asm("s_lshl_b32 s24, s22, 13")
    asm("s_add_u32 s24, s24, s21")
    for k in range(NB): bload(k)
    for k in range(40):
        out = min(NB - 1, 39 - k)
        asm("s_waitcnt vmcnt(%d)" % out)
        mfma32(asm, 16, v(96 + 4 * k, 4), a(4 * (k % NB), 4), first=(k == 0))
        if k + NB < 40:
            bload(k + NB)
    asm("s_nop 11")
    for r in range(0, 16, 2): bf_round2(asm, 16 + r, 17 + r, 7)
    asm("v_and_b32 v7, 31, v1")
    asm("s_lshl_b32 s18, s22, 5")
    asm("v_add_u32 v7, s18, v7")
    asm("v_lshlrev_b32 v7, 2, v7")
    asm("v_mul_u32_u24 v8, %d, v4" % (4 * O_AS))
    asm("v_add_u32 v7, v7, v8")
    asm("v_add_u32 v7, %d, v7" % O_A)
    for r in range(16):
        asm("ds_write_b32 v7, %s offset:%d" % (v(16 + r), (8 * (r >> 2) + (r & 3)) * O_AS))
    asm("s_add_u32 s22, s22, 4")
    asm("s_cmp_lt_u32 s22, 14")
    asm("s_cbranch_scc1 %s" % lp)
    asm("s_waitcnt lgkmcnt(0)")
    asm("s_barrier")
    emit_oepilogue(asm, sSeg, sW)

def emit_oepilogue(asm, sSeg, sW):
    srd(asm, 8, A_X, 2048 * 896)
    srd(asm, 12, A_OUT, 2048 * 896)
    asm("v_min_u32 v3, 55, v1")
    group_col_bytes(asm, 3, 4, 5, 2)
    asm("v_lshlrev_b32 v5, 1, v4")
    GA, C1, SB, GB, WR = 40, 48, 56, 64, 72
    load_mod8(asm, GA, 5, 2); load_mod8(asm, C1, 5, 4); load_mod8(asm, SB, 5, 3); load_mod8(asm, GB, 5, 5)
    srd(asm, 28, B_WR, 896)
    asm("buffer_load_dwordx2 v[80:81], v4, s[28:31], 0 offen")
    asm("buffer_load_dwordx2 v[82:83], v4, s[28:31], 0 offen offset:16")
    asm("s_mov_b32 s22, -1"); asm("s_mov_b32 s23, 0x00ffffff")
    asm("s_waitcnt vmcnt(0)")
    for i in range(4):
        asm("v_lshlrev_b32 %s, 16, %s" % (v(WR + 2 * i), v(80 + i)))
        asm("v_and_b32 %s, 0xffff0000, %s" % (v(WR + 2 * i + 1), v(80 + i)))
    for i in range(0, 8, 2):
        asm("v_add_f32 %s, 1.0, %s" % (v(C1 + i), v(C1 + i)))
        asm("v_add_f32 %s, 1.0, %s" % (v(C1 + i + 1), v(C1 + i + 1)))
        bf_round2(asm, C1 + i, C1 + i + 1, 6)
    asm("s_lshl_b32 s16, %s, 3" % s(sW))
    asm("s_mov_b32 s17, 0")
    lp = asm.newlabel("orow")
    asm.label(lp)
    asm("s_add_u32 s18, s16, s17")
    asm("s_lshl_b32 s19, %s, 5" % s(sSeg))
    asm("s_add_u32 s19, s19, s18")
    asm("s_mul_i32 s24, s19, 896")
    asm("s_mul_i32 s25, s18, %d" % O_AS)
    asm("v_add_u32 v6, s25, v5")
    X = [16, 24]; X1 = [84, 92]
    for r in range(2):
        asm("buffer_load_dwordx2 %s, v4, s[8:11], s24 offen offset:%d" % (v(8 + 4 * r, 2), 896 * r))
        asm("buffer_load_dwordx2 %s, v4, s[8:11], s24 offen offset:%d" % (v(10 + 4 * r, 2), 896 * r + 16))
        asm("ds_read_b128 %s, v6 offset:%d" % (v(X[r], 4), O_A + r * O_AS))
        asm("ds_read_b128 %s, v6 offset:%d" % (v(X[r] + 4, 4), O_A + r * O_AS + 32))
    asm("s_waitcnt vmcnt(0) lgkmcnt(0)")
    for r in range(2):
        for i in range(0, 8, 2):
            x = X[r] + i
            asm("v_mul_f32 %s, %s, %s" % (v(x), v(x), v(GA + i)))
            asm("v_mul_f32 %s, %s, %s" % (v(x + 1), v(x + 1), v(GA + i + 1)))
            bf_round2(asm, x, x + 1, 6 + 1)
            asm("v_lshlrev_b32 v32, 16, %s" % v(8 + 4 * r + i // 2))
            asm("v_and_b32 v33, 0xffff0000, %s" % v(8 + 4 * r + i // 2))
            asm("v_add_f32 %s, %s, v32" % (v(x), v(x)))
            asm("v_add_f32 %s, %s, v33" % (v(x + 1), v(x + 1)))
            bf_round2(asm, x, x + 1, 7)
        for i in range(8):
            asm("v_cndmask_b32 %s, 0, %s, s[22:23]" % (v(X[r] + i), v(X[r] + i)))
            asm("v_mov_b32 %s, %s" % (v(X1[r] + i), v(X[r] + i)))
    ln_core(asm, X, 32, 100, C1, SB, 2)
    for r in range(2):
        for i in range(0, 8, 2): bf_round2(asm, X[r] + i, X[r] + i + 1, 7)
        asm("v_mul_f32 %s, %s, %s" % (v(32 + r), v(X[r]), v(WR)))
        for i in range(1, 8): asm("v_fmac_f32 %s, %s, %s" % (v(32 + r), v(X[r] + i), v(WR + i)))
        asm("v_cndmask_b32 %s, 0, %s, s[22:23]" % (v(32 + r), v(32 + r)))
    wave_sum(asm, [32, 33], 100)
    bf_round2(asm, 32, 33, 7)
    asm("s_mov_b64 exec, s[22:23]")
    for r in range(2):
        for i in range(4):
            asm("v_cvt_pk_bf16_f32 %s, %s, %s" % (v(8 + i), v(X[r] + 2 * i), v(X[r] + 2 * i + 1)))
            asm("v_cvt_pk_bf16_f32 %s, %s, %s" % (v(12 + i), v(X1[r] + 2 * i), v(X1[r] + 2 * i + 1)))
        asm("s_add_u32 s25, s24, %d" % (L.H2 + 896 * r))
        asm("buffer_store_dwordx2 v[8:9], v4, %s, s25 offen sc1" % WS)
        asm("buffer_store_dwordx2 v[10:11], v4, %s, s25 offen offset:16 sc1" % WS)
        asm("s_add_u32 s25, s24, %d" % (L.X1 + 896 * r))
        asm("buffer_store_dwordx2 v[12:13], v4, %s, s25 offen sc1" % WS)
        asm("buffer_store_dwordx2 v[14:15], v4, %s, s25 offen offset:16 sc1" % WS)
        for i in range(0, 8, 2):
            x = X[r] + i
            asm("v_mul_f32 %s, %s, %s" % (v(x), v(x), v(GB + i)))
            asm("v_mul_f32 %s, %s, %s" % (v(x + 1), v(x + 1), v(GB + i + 1)))
            bf_round2(asm, x, x + 1, 7)
            asm("v_add_f32 %s, %s, %s" % (v(x), v(x), v(X1[r] + i)))
            asm("v_add_f32 %s, %s, %s" % (v(x + 1), v(x + 1), v(X1[r] + i + 1)))
        for i in range(4):
            asm("v_cvt_pk_bf16_f32 %s, %s, %s" % (v(104 + 4 * r + i), v(X[r] + 2 * i), v(X[r] + 2 * i + 1)))
        asm("buffer_store_dwordx2 %s, v4, s[12:15], s24 offen offset:%d sc1" % (v(104 + 4 * r, 2), 896 * r))
        asm("buffer_store_dwordx2 %s, v4, s[12:15], s24 offen offset:%d sc1" % (v(106 + 4 * r, 2), 896 * r + 16))
    asm("s_mov_b64 exec, 1")
    asm("s_lshl_b32 s25, s19, 2")
    asm("s_add_u32 s25, s25, %d" % L.RB)
    asm("v_mov_b32 v7, 0")
    asm("buffer_store_dwordx2 v[32:33], v7, %s, s25 offen sc1" % WS)
    asm("s_mov_b64 exec, -1")
    asm("s_add_u32 s17, s17, 2")
    asm("s_cmp_lt_u32 s17, 8")
    asm("s_cbranch_scc1 %s" % lp)

def top2(asm):
    asm("v_lshlrev_b32 v2, 5, v0")
    asm("s_mov_b32 s16, %d" % L.RB)
    asm("buffer_load_dwordx4 v[8:11], v2, %s, s16 offen sc1" % WS)
    asm("buffer_load_dwordx4 v[12:15], v2, %s, s16 offen offset:16 sc1" % WS)
    asm("v_lshlrev_b32 v3, 3, v0")
    asm("s_waitcnt vmcnt(0)")
    for rnd in range(2):
        asm("v_mov_b32 v16, v8"); asm("v_mov_b32 v17, v3")
        for i in range(1, 8):
            asm("v_cmp_gt_f32 vcc, %s, v16" % v(8 + i))
            asm("v_add_u32 v18, %d, v3" % i)
            asm("s_nop 0")
            asm("v_cndmask_b32 v16, v16, %s, vcc" % v(8 + i))
            asm("v_cndmask_b32 v17, v17, v18, vcc")
        steps = [("dpp", "quad_perm:[1,0,3,2]"), ("dpp", "quad_perm:[2,3,0,1]"), ("dpp", "row_half_mirror"), ("dpp", "row_mirror"), ("p16", None), ("p32", None)]
        for kind, d in steps:
            if kind == "dpp":
                asm("s_nop 1")
                asm("v_mov_b32_dpp v18, v16 %s row_mask:0xf bank_mask:0xf" % d)
                asm("v_mov_b32_dpp v19, v17 %s row_mask:0xf bank_mask:0xf" % d)
            else:
                op = "v_permlane16_swap_b32" if kind == "p16" else "v_permlane32_swap_b32"
                asm("v_mov_b32 v18, v16"); asm("v_mov_b32 v19, v17"); asm("v_mov_b32 v20, v16"); asm("v_mov_b32 v21, v17")
                asm("s_nop 1")
                asm("%s v18, v20" % op); asm("%s v19, v21" % op)
                asm("s_nop 1")
                asm("v_cmp_gt_f32 vcc, v20, v18")
                asm("v_cmp_eq_f32 s[44:45], v20, v18")
                asm("v_cmp_lt_u32 s[46:47], v21, v19")
                asm("s_nop 1")
                asm("s_and_b64 s[44:45], s[44:45], s[46:47]")
                asm("s_or_b64 vcc, vcc, s[44:45]")
                asm("v_cndmask_b32 v18, v18, v20, vcc")
                asm("v_cndmask_b32 v19, v19, v21, vcc")
            asm("v_cmp_gt_f32 vcc, v18, v16")
            asm("v_cmp_eq_f32 s[44:45], v18, v16")
            asm("v_cmp_lt_u32 s[46:47], v19, v17")
            asm("s_nop 1")
            asm("s_and_b64 s[44:45], s[44:45], s[46:47]")
            asm("s_or_b64 vcc, vcc, s[44:45]")
            asm("v_cndmask_b32 v16, v16, v18, vcc")
            asm("v_cndmask_b32 v17, v17, v19, vcc")
        asm("v_lshrrev_b32 v18, 6, v0")
        asm("v_lshlrev_b32 v18, 3, v18")
        asm("s_barrier")
        asm("ds_write_b64 v18, v[16:17]")
        asm("s_waitcnt lgkmcnt(0)")
        asm("s_barrier")
        asm("v_mov_b32 v18, 0")
        asm("ds_read_b128 v[20:23], v18")
        asm("ds_read_b128 v[24:27], v18 offset:16")
        asm("s_waitcnt lgkmcnt(0)")
        asm("v_mov_b32 v16, v20"); asm("v_mov_b32 v17, v21")
        for (vv, ii) in [(22, 23), (24, 25), (26, 27)]:
            asm("v_cmp_gt_f32 vcc, %s, v16" % v(vv))
            asm("s_nop 1")
            asm("v_cndmask_b32 v16, v16, %s, vcc" % v(vv))
            asm("v_cndmask_b32 v17, v17, %s, vcc" % v(ii))
        asm("s_nop 0")
        asm("v_readfirstlane_b32 %s, v17" % s(40 + rnd))
        asm("v_readfirstlane_b32 %s, v16" % s(42 + rnd))
        if rnd == 0:
            asm("s_nop 3")
            asm("v_mov_b32 v19, 0xff800000")
            for i in range(8):
                asm("v_add_u32 v18, %d, v3" % i)
                asm("v_cmp_eq_u32 vcc, s40, v18")
                asm("s_nop 1")
                asm("v_cndmask_b32 %s, %s, v19, vcc" % (v(8 + i), v(8 + i)))
    asm("s_nop 3")

def emit_moe1(asm, sTask):
    top2(asm)
    srd(asm, 8, B_WG, 448 * 3584)
    srd(asm, 12, B_WU, 448 * 3584)
    srd(asm, 28, B_WD, 1792 * 896)
    asm("v_lshlrev_b32 v2, 2, v0")
    asm("s_mul_i32 s16, s40, 896"); asm("s_add_u32 s16, s16, %d" % L.H2)
    asm("s_mul_i32 s17, s41, 896"); asm("s_add_u32 s17, s17, %d" % L.H2)
    asm("v_min_u32 v3, 223, v0")
    asm("v_lshlrev_b32 v3, 2, v3")
    asm("buffer_load_dword v8, v3, %s, s16 offen sc1" % WS)
    asm("buffer_load_dword v9, v3, %s, s17 offen sc1" % WS)
    asm("v_and_b32 v4, 15, v0")
    asm("v_lshrrev_b32 v5, 4, v0")
    asm("v_mul_u32_u24 v6, %d, v5" % (28 * 3584))
    asm("v_lshl_add_u32 v6, v4, 2, v6")
    asm("s_lshl_b32 s18, %s, 6" % s(sTask))
    for r in range(28):
        asm("s_add_u32 s19, s18, %d" % (r * 3584))
        asm("buffer_load_dword %s, v6, s[8:11], s19 offen" % v(32 + r))
        asm("buffer_load_dword %s, v6, s[12:15], s19 offen" % v(64 + r))
        if r == 20: asm("s_waitcnt vmcnt(30)")
    asm("s_waitcnt vmcnt(56)")
    asm("v_lshlrev_b32 v10, 16, v8"); asm("v_and_b32 v11, 0xffff0000, v8")
    asm("v_lshlrev_b32 v12, 16, v9"); asm("v_and_b32 v13, 0xffff0000, v9")
    asm("v_lshlrev_b32 v3, 1, v3")
    asm("ds_write_b64 v3, v[10:11] offset:1024")
    asm("ds_write_b64 v3, v[12:13] offset:%d" % (1024 + 1792))
    asm("s_waitcnt lgkmcnt(0)")
    asm("s_barrier")
    asm("v_mul_u32_u24 v7, 112, v5")
    for r in range(0, 28, 4):
        asm("ds_read_b128 %s, v7 offset:%d" % (v(96 + r, 4), 1024 + r * 4))
        asm("ds_read_b128 %s, v7 offset:%d" % (v(128 + r, 4), 1024 + 1792 + r * 4))
    asm("s_waitcnt vmcnt(0) lgkmcnt(0)")
    for i in range(8): asm("v_mov_b32 %s, 0" % v(16 + i))
    for r in range(28):
        for mat, base in ((0, 32), (1, 64)):
            asm("v_lshlrev_b32 v14, 16, %s" % v(base + r))
            asm("v_and_b32 v15, 0xffff0000, %s" % v(base + r))
            ac = 16 + 4 * mat
            asm("v_fmac_f32 %s, v14, %s" % (v(ac), v(96 + r)))
            asm("v_fmac_f32 %s, v15, %s" % (v(ac + 1), v(96 + r)))
            asm("v_fmac_f32 %s, v14, %s" % (v(ac + 2), v(128 + r)))
            asm("v_fmac_f32 %s, v15, %s" % (v(ac + 3), v(128 + r)))
    asm("v_lshlrev_b32 v7, 5, v0")
    asm("ds_write_b128 v7, v[16:19] offset:8192")
    asm("ds_write_b128 v7, v[20:23] offset:8208")
    asm("s_waitcnt lgkmcnt(0)")
    asm("s_barrier")
    asm("v_and_b32 v7, 127, v0")
    asm("v_lshlrev_b32 v7, 2, v7")
    for k in range(16):
        asm("ds_read_b32 %s, v7 offset:%d" % (v(32 + k), 8192 + 512 * k))
        if k == 7: asm("s_waitcnt lgkmcnt(0)")
    asm("s_waitcnt lgkmcnt(0)")
    for st in [8, 4, 2, 1]:
        for k in range(st): asm("v_add_f32 %s, %s, %s" % (v(32 + k), v(32 + k), v(32 + k + st)))
    bf_round1(asm, 32, 14)
    asm("s_barrier")
    asm("ds_write_b32 v7, v32 offset:16384")
    asm("s_waitcnt lgkmcnt(0)")
    asm("s_barrier")
    asm("v_and_b32 v7, 63, v0")
    asm("v_lshrrev_b32 v8, 2, v7")
    asm("v_lshlrev_b32 v8, 5, v8")
    asm("v_and_b32 v9, 3, v7")
    asm("v_lshl_add_u32 v8, v9, 2, v8")
    asm("ds_read_b32 v10, v8 offset:16384")
    asm("ds_read_b32 v11, v8 offset:16400")
    asm("s_waitcnt lgkmcnt(0)")
    asm("v_mul_f32 v12, 0xbfb8aa3b, v10")
    asm("v_exp_f32 v12, v12"); asm("s_nop 0")
    asm("v_add_f32 v12, 1.0, v12")
    asm("v_rcp_f32 v12, v12"); asm("s_nop 0")
    asm("v_mul_f32 v10, v10, v12")
    bf_round1(asm, 10, 14)
    asm("v_mul_f32 v10, v10, v11")
    bf_round1(asm, 10, 14)
    asm("v_lshrrev_b32 v8, 2, v7")
    asm("v_lshlrev_b32 v8, 1, v8")
    asm("v_and_b32 v11, 1, v9")
    asm("v_add_u32 v8, v8, v11")
    asm("v_lshrrev_b32 v11, 1, v9")
    asm("v_lshl_add_u32 v8, v11, 5, v8")
    asm("v_lshlrev_b32 v8, 2, v8")
    asm("ds_write_b32 v8, v10 offset:17408")
    asm("v_min_u32 v3, 223, v0")
    asm("v_lshlrev_b32 v3, 2, v3")
    asm("s_mul_i32 s18, %s, %d" % (s(sTask), 32 * 896))
    for r in range(32):
        asm("s_add_u32 s19, s18, %d" % (r * 896))
        asm("buffer_load_dword %s, v3, s[28:31], s19 offen" % v(32 + r))
    asm("s_waitcnt lgkmcnt(0)")
    asm("s_barrier")
    asm("v_mov_b32 v7, 0")
    for r in range(0, 32, 4):
        asm("ds_read_b128 %s, v7 offset:%d" % (v(96 + r, 4), 17408 + r * 4))
        asm("ds_read_b128 %s, v7 offset:%d" % (v(128 + r, 4), 17408 + 128 + r * 4))
    for i in range(4): asm("v_mov_b32 %s, 0" % v(16 + i))
    asm("s_waitcnt vmcnt(0) lgkmcnt(0)")
    for r in range(32):
        asm("v_lshlrev_b32 v14, 16, %s" % v(32 + r))
        asm("v_and_b32 v15, 0xffff0000, %s" % v(32 + r))
        asm("v_fmac_f32 v16, v14, %s" % v(96 + r)); asm("v_fmac_f32 v17, v15, %s" % v(96 + r))
        asm("v_fmac_f32 v18, v14, %s" % v(128 + r)); asm("v_fmac_f32 v19, v15, %s" % v(128 + r))
    asm("v_lshlrev_b32 v3, 1, v3")
    asm("s_mul_i32 s18, %s, 3584" % s(sTask))
    asm("s_add_u32 s18, s18, %d" % L.YP)
    asm("v_cmp_gt_u32 vcc, 224, v0")
    asm("s_and_saveexec_b64 s[44:45], vcc")
    l = asm.newlabel("m1s")
    asm("s_cbranch_execz %s" % l)
    asm("buffer_store_dwordx2 v[16:17], v3, %s, s18 offen sc1" % WS)
    asm("buffer_store_dwordx2 v[18:19], v3, %s, s18 offen offset:1792 sc1" % WS)
    asm.label(l)
    asm("s_mov_b64 exec, s[44:45]")

def emit_moe2(asm, sTask):
    top2(asm)
    srd(asm, 12, A_OUT, 2048 * 896)
    asm("s_cmp_eq_u32 %s, 0" % s(sTask))
    asm("s_cselect_b32 s40, s40, s41")
    asm("s_cselect_b32 s42, s42, s43")
    asm("v_min_u32 v3, 223, v0")
    asm("v_lshlrev_b32 v4, 3, v3")
    asm("s_mul_i32 s18, %s, 1792" % s(sTask))
    asm("s_add_u32 s18, s18, %d" % L.YP)
    for k in range(56):
        asm("buffer_load_dwordx2 %s, v4, %s, s18 offen sc1" % (v(32 + 2 * k, 2), WS))
        asm("s_add_u32 s18, s18, 3584")
    asm("v_lshlrev_b32 v5, 2, v3")
    asm("s_mul_i32 s19, s40, 896")
    asm("s_add_u32 s20, s19, %d" % L.H2)
    asm("buffer_load_dword v8, v5, %s, s20 offen sc1" % WS)
    asm("s_add_u32 s20, s19, %d" % L.X1)
    asm("buffer_load_dword v9, v5, %s, s20 offen sc1" % WS)
    asm("s_mov_b32 s20, %d" % (L.MOD + 5 * 448 * 4))
    asm("buffer_load_dwordx2 v[10:11], v4, %s, s20 offen sc1" % WS)
    asm("s_waitcnt vmcnt(0)")
    for st in [28, 14, 7]:
        for k in range(st):
            asm("v_pk_add_f32 %s, %s, %s" % (v(32 + 2 * k, 2), v(32 + 2 * k, 2), v(32 + 2 * (k + st), 2)))
    for k in range(1, 7):
        asm("v_pk_add_f32 %s, %s, %s" % (v(32, 2), v(32, 2), v(32 + 2 * k, 2)))
    bf_round2(asm, 32, 33, 14)
    asm("v_mov_b32 v12, s42")
    asm("v_mul_f32 v12, 0xbfb8aa3b, v12")
    asm("v_exp_f32 v12, v12"); asm("s_nop 0")
    asm("v_add_f32 v12, 1.0, v12")
    asm("v_rcp_f32 v12, v12"); asm("s_nop 0")
    bf_round1(asm, 12, 14)
    asm("v_mul_f32 v32, v32, v12"); asm("v_mul_f32 v33, v33, v12")
    bf_round2(asm, 32, 33, 14)
    asm("v_lshlrev_b32 v14, 16, v8"); asm("v_and_b32 v15, 0xffff0000, v8")
    asm("v_add_f32 v32, v32, v14"); asm("v_add_f32 v33, v33, v15")
    bf_round2(asm, 32, 33, 14)
    asm("v_mul_f32 v32, v32, v10"); asm("v_mul_f32 v33, v33, v11")
    bf_round2(asm, 32, 33, 14)
    asm("v_lshlrev_b32 v14, 16, v9"); asm("v_and_b32 v15, 0xffff0000, v9")
    asm("v_add_f32 v32, v32, v14"); asm("v_add_f32 v33, v33, v15")
    asm("v_cvt_pk_bf16_f32 v32, v32, v33")
    asm("v_cmp_gt_u32 vcc, 224, v0")
    asm("s_and_saveexec_b64 s[44:45], vcc")
    l = asm.newlabel("m2s")
    asm("s_cbranch_execz %s" % l)
    asm("buffer_store_dword v32, v5, s[12:15], s19 offen sc1")
    asm.label(l)
    asm("s_mov_b64 exec, s[44:45]")
```

```python
from asmlib import *
import layout as L

A_X, A_MEM0, A_WQ, A_WK, A_WV, A_WO, A_SEG, B_X, B_WR, B_WG, B_WU, B_WD, A_C, A_WMOD, A_OUT, A_DBG, A_WS = [8 * i for i in range(17)]
WS = s(4, 4)

def srd(asm, dst, koff, nbytes):
    asm("s_load_dwordx2 %s, s[0:1], %d" % (s(dst, 2), koff))
    asm("s_waitcnt lgkmcnt(0)")
    asm("s_and_b32 %s, %s, 0xffff" % (s(dst + 1), s(dst + 1)))
    asm("s_mov_b32 %s, %d" % (s(dst + 2), nbytes))
    asm("s_mov_b32 %s, 0x20000" % s(dst + 3))

def bf_round2(asm, a_, b_, tmp):
    asm("v_cvt_pk_bf16_f32 %s, %s, %s" % (v(tmp), v(a_), v(b_)))
    asm("v_lshlrev_b32 %s, 16, %s" % (v(a_), v(tmp)))
    asm("v_and_b32 %s, 0xffff0000, %s" % (v(b_), v(tmp)))
def bf_round1(asm, a_, tmp):
    asm("v_cvt_pk_bf16_f32 %s, %s, %s" % (v(tmp), v(a_), v(a_)))
    asm("v_lshlrev_b32 %s, 16, %s" % (v(a_), v(tmp)))

def wave_sum(asm, regs, tmp):
    for dpp in ["quad_perm:[1,0,3,2]", "quad_perm:[2,3,0,1]", "row_half_mirror", "row_mirror"]:
        asm("s_nop 1")
        for r in regs:
            asm("v_add_f32_dpp %s, %s, %s %s row_mask:0xf bank_mask:0xf" % (v(r), v(r), v(r), dpp))
    for sw in ["v_permlane16_swap_b32", "v_permlane32_swap_b32"]:
        for i, r in enumerate(regs): asm("v_mov_b32 %s, %s" % (v(tmp + i), v(r)))
        asm("s_nop 1")
        for i, r in enumerate(regs): asm("%s %s, %s" % (sw, v(r), v(tmp + i)))
        asm("s_nop 1")
        for i, r in enumerate(regs): asm("v_add_f32 %s, %s, %s" % (v(r), v(r), v(tmp + i)))

def emit_mod(asm, sTask):
    srd(asm, 8, A_WMOD, 448 * 5376)
    srd(asm, 12, A_C, 896)
    asm("v_and_b32 v1, 7, v0")
    asm("v_lshrrev_b32 v2, 3, v0")
    asm("v_mul_u32_u24 v3, 14, v2")
    asm("v_mul_u32_u24 v4, 5376, v3")
    asm("v_lshl_add_u32 v4, v1, 4, v4")
    asm("s_lshl_b32 s16, %s, 7" % s(sTask))
    asm("v_add_u32 v4, s16, v4")
    asm("v_lshlrev_b32 v5, 1, v3")
    for r in range(14):
        asm("s_mov_b32 s17, %d" % (r * 5376))
        asm("buffer_load_dwordx4 %s, v4, s[8:11], s17 offen" % v(32 + 4 * r, 4))
    for r in range(14):
        asm("buffer_load_ushort %s, v5, s[12:15], 0 offen offset:%d" % (v(8 + r), 2 * r))
    asm("s_waitcnt vmcnt(0)")
    for r in range(14):
        asm("v_lshlrev_b32 %s, 16, %s" % (v(8 + r), v(8 + r)))
    for r in range(14):
        asm("v_mul_f32 v6, 0xbfb8aa3b, %s" % v(8 + r))
        asm("v_exp_f32 v6, v6")
        asm("s_nop 0")
        asm("v_add_f32 v6, 1.0, v6")
        asm("v_rcp_f32 v6, v6")
        asm("s_nop 0")
        asm("v_mul_f32 %s, %s, v6" % (v(8 + r), v(8 + r)))
        bf_round1(asm, 8 + r, 6)
    for i in range(8): asm("v_mov_b32 %s, 0" % v(24 + i))
    for r in range(14):
        for i in range(4):
            asm("v_lshlrev_b32 v6, 16, %s" % v(32 + 4 * r + i))
            asm("v_and_b32 v7, 0xffff0000, %s" % v(32 + 4 * r + i))
            asm("v_fmac_f32 %s, %s, v6" % (v(24 + 2 * i), v(8 + r)))
            asm("v_fmac_f32 %s, %s, v7" % (v(24 + 2 * i + 1), v(8 + r)))
    asm("v_lshlrev_b32 v6, 8, v2")
    asm("v_lshl_add_u32 v6, v1, 5, v6")
    asm("ds_write_b128 v6, v[24:27]")
    asm("ds_write_b128 v6, v[28:31] offset:16")
    asm("s_waitcnt lgkmcnt(0)")
    asm("s_barrier")
    l = asm.newlabel("modskip")
    asm("v_cmp_gt_u32 vcc, 64, v0")
    asm("s_and_saveexec_b64 s[18:19], vcc")
    asm("s_cbranch_execz %s" % l)
    asm("v_lshlrev_b32 v6, 2, v0")
    for k in range(32):
        asm("ds_read_b32 %s, v6 offset:%d" % (v(32 + k), 256 * k))
        if k % 8 == 7: asm("s_waitcnt lgkmcnt(0)")
    for st in [16, 8, 4, 2, 1]:
        for k in range(st):
            asm("v_add_f32 %s, %s, %s" % (v(32 + k), v(32 + k), v(32 + k + st)))
    bf_round1(asm, 32, 7)
    asm("s_lshl_b32 s16, %s, 8" % s(sTask))
    asm("s_add_u32 s16, s16, %d" % L.MOD)
    asm("buffer_store_dword v32, v6, %s, s16 offen sc1" % WS)
    asm.label(l)
    asm("s_mov_b64 exec, s[18:19]")

def ln_core(asm, X, M_, T, C1, SA, nrow):
    n = nrow
    S = [M_ + i for i in range(n)]; V_ = [M_ + n + i for i in range(n)]
    for r in range(n):
        x = X[r]
        asm("v_add_f32 %s, %s, %s" % (v(S[r]), v(x), v(x + 1)))
        for i in range(2, 8): asm("v_add_f32 %s, %s, %s" % (v(S[r]), v(S[r]), v(x + i)))
    wave_sum(asm, S, T)
    asm("s_mov_b32 s20, 0x3b124925")
    for r in range(n): asm("v_mul_f32 %s, s20, %s" % (v(S[r]), v(S[r])))
    for r in range(n):
        x = X[r]
        asm("v_sub_f32 %s, %s, %s" % (v(T), v(x), v(S[r])))
        asm("v_mul_f32 %s, %s, %s" % (v(V_[r]), v(T), v(T)))
        for i in range(1, 8):
            asm("v_sub_f32 %s, %s, %s" % (v(T), v(x + i), v(S[r])))
            asm("v_fmac_f32 %s, %s, %s" % (v(V_[r]), v(T), v(T)))
        asm("v_cndmask_b32 %s, 0, %s, s[22:23]" % (v(V_[r]), v(V_[r])))
    wave_sum(asm, V_, T)
    for r in range(n):
        asm("v_mul_f32 %s, s20, %s" % (v(V_[r]), v(V_[r])))
        bf_round2(asm, S[r], V_[r], T)
        asm("v_add_f32 %s, 0x3727c5ac, %s" % (v(V_[r]), v(V_[r])))
        bf_round1(asm, V_[r], T)
        asm("v_sqrt_f32 %s, %s" % (v(V_[r]), v(V_[r])))
        asm("s_nop 0")
        bf_round1(asm, V_[r], T)
        asm("v_rcp_f32 %s, %s" % (v(V_[r]), v(V_[r])))
        asm("s_nop 0")
    for r in range(n):
        x = X[r]
        for i in range(0, 8, 2):
            asm("v_sub_f32 %s, %s, %s" % (v(x + i), v(x + i), v(S[r])))
            asm("v_sub_f32 %s, %s, %s" % (v(x + i + 1), v(x + i + 1), v(S[r])))
            bf_round2(asm, x + i, x + i + 1, T)
            asm("v_mul_f32 %s, %s, %s" % (v(x + i), v(x + i), v(V_[r])))
            asm("v_mul_f32 %s, %s, %s" % (v(x + i + 1), v(x + i + 1), v(V_[r])))
            bf_round2(asm, x + i, x + i + 1, T)
            asm("v_mul_f32 %s, %s, %s" % (v(x + i), v(x + i), v(C1 + i)))
            asm("v_mul_f32 %s, %s, %s" % (v(x + i + 1), v(x + i + 1), v(C1 + i + 1)))
            bf_round2(asm, x + i, x + i + 1, T)
            asm("v_add_f32 %s, %s, %s" % (v(x + i), v(x + i), v(SA + i)))
            asm("v_add_f32 %s, %s, %s" % (v(x + i + 1), v(x + i + 1), v(SA + i + 1)))

def group_col_bytes(asm, vl, vout, vt, elem):
    asm("v_lshrrev_b32 %s, 1, %s" % (v(vout), v(vl)))
    asm("v_lshlrev_b32 %s, 4, %s" % (v(vout), v(vout)))
    asm("v_and_b32 %s, 1, %s" % (v(vt), v(vl)))
    asm("v_lshl_add_u32 %s, %s, 2, %s" % (v(vout), v(vt), v(vout)))
    asm("v_mul_u32_u24 %s, %d, %s" % (v(vout), elem, v(vout)))

def load_mod8(asm, dst, vcolb4, row):
    asm("s_mov_b32 s21, %d" % (L.MOD + row * 448 * 4))
    asm("buffer_load_dwordx4 %s, %s, %s, s21 offen sc1" % (v(dst, 4), v(vcolb4), WS))
    asm("buffer_load_dwordx4 %s, %s, %s, s21 offen offset:32 sc1" % (v(dst + 4, 4), v(vcolb4), WS))

def emit_ln1(asm, sTask):
    srd(asm, 8, A_X, 2048 * 896)
    asm("v_and_b32 v1, 63, v0")
    asm("v_lshrrev_b32 v2, 6, v0")
    asm("s_nop 0")
    asm("v_readfirstlane_b32 s16, v2")
    asm("v_min_u32 v3, 55, v1")
    group_col_bytes(asm, 3, 4, 5, 2)
    asm("v_lshlrev_b32 v5, 1, v4")
    load_mod8(asm, 40, 5, 1)
    load_mod8(asm, 48, 5, 0)
    asm("s_lshl_b32 s17, %s, 3" % s(sTask))
    asm("s_lshl_b32 s16, s16, 1")
    asm("s_add_u32 s17, s17, s16")
    asm("s_mul_i32 s18, s17, 896")
    for r in range(2):
        asm("buffer_load_dwordx2 %s, v4, s[8:11], s18 offen offset:%d" % (v(8 + 4 * r, 2), 896 * r))
        asm("buffer_load_dwordx2 %s, v4, s[8:11], s18 offen offset:%d" % (v(10 + 4 * r, 2), 896 * r + 16))
    asm("s_mov_b32 s22, -1"); asm("s_mov_b32 s23, 0x00ffffff")
    asm("s_waitcnt vmcnt(0)")
    X = [16, 24]
    for r in range(2):
        for i in range(4):
            asm("v_lshlrev_b32 %s, 16, %s" % (v(X[r] + 2 * i), v(8 + 4 * r + i)))
            asm("v_and_b32 %s, 0xffff0000, %s" % (v(X[r] + 2 * i + 1), v(8 + 4 * r + i)))
        for i in range(8): asm("v_cndmask_b32 %s, 0, %s, s[22:23]" % (v(X[r] + i), v(X[r] + i)))
    for i in range(0, 8, 2):
        asm("v_add_f32 %s, 1.0, %s" % (v(40 + i), v(40 + i)))
        asm("v_add_f32 %s, 1.0, %s" % (v(41 + i), v(41 + i)))
        bf_round2(asm, 40 + i, 41 + i, 6)
    ln_core(asm, X, 32, 56, 40, 48, 2)
    asm("s_lshr_b32 s18, s17, 5")
    asm("s_mul_i32 s18, s18, 28672")
    asm("s_and_b32 s19, s17, 31")
    asm("s_lshl_b32 s19, s19, 4")
    asm("s_add_u32 s18, s18, s19")
    asm("s_add_u32 s18, s18, %d" % L.HF)
    asm("v_lshlrev_b32 v6, 9, v3")
    asm("s_mov_b64 exec, s[22:23]")
    for r in range(2):
        for i in range(4):
            asm("v_cvt_pk_bf16_f32 %s, %s, %s" % (v(8 + 4 * r + i), v(X[r] + 2 * i), v(X[r] + 2 * i + 1)))
        asm("buffer_store_dwordx4 %s, v6, %s, s18 offen offset:%d" % (v(8 + 4 * r, 4), WS, 16 * r))
    asm("s_mov_b64 exec, -1")

def emit_gu(asm, sTask):
    sH, sQ, sK, sW, sMat = 24, 25, 26, 27, 28
    asm("s_lshr_b32 %s, %s, 7" % (s(sMat), s(sTask)))
    asm("s_bfe_u32 %s, %s, 0x40003" % (s(sH), s(sTask)))
    asm("s_bfe_u32 %s, %s, 0x20001" % (s(sQ), s(sTask)))
    asm("v_lshrrev_b32 v2, 6, v0")
    asm("s_nop 0")
    asm("v_readfirstlane_b32 %s, v2" % s(sW))
    asm("s_and_b32 %s, %s, 1" % (s(sK), s(sTask)))
    asm("s_lshl_b32 %s, %s, 2" % (s(sK), s(sK)))
    asm("s_add_u32 %s, %s, %s" % (s(sK), s(sK), s(sW)))
    asm("v_and_b32 v1, 63, v0")
    asm("v_and_b32 v3, 15, v1")
    asm("v_lshrrev_b32 v4, 4, v1")
    lU = asm.newlabel("guU"); lB = asm.newlabel("guB")
    VB = 32
    asm("s_cmp_eq_u32 %s, 1" % s(sMat))
    asm("s_cbranch_scc1 %s" % lU)
    srd(asm, 8, A_WQ, 448 * 8192)
    srd(asm, 12, A_WK, 448 * 8192)
    asm("s_mul_i32 s16, %s, 112" % s(sQ))
    asm("v_add_u32 v5, s16, v3")
    asm("v_lshlrev_b32 v5, 13, v5")
    asm("v_lshl_add_u32 v5, v4, 4, v5")
    asm("s_lshl_b32 s17, %s, 9" % s(sH))
    for t in range(7):
        asm("s_add_u32 s18, s17, %d" % (t * 16 * 8192))
        for ks in range(8):
            asm("buffer_load_dwordx4 %s, v5, s[12:15], s18 offen offset:%d" % (v(VB + 32 * t + 4 * ks, 4), ks * 64))
        if t == 3: asm("s_waitcnt vmcnt(16)")
    asm("s_branch %s" % lB)
    asm.label(lU)
    srd(asm, 8, A_WV, 448 * 8192)
    srd(asm, 12, A_WO, 4096 * 896)
    asm("v_min_u32 v6, 13, v3")
    asm("v_mul_u32_u24 v5, 896, v4")
    asm("v_lshl_add_u32 v5, v6, 4, v5")
    asm("s_mul_i32 s16, %s, 224" % s(sQ))
    asm("s_mul_i32 s17, %s, %d" % (s(sH), 256 * 896))
    asm("s_add_u32 s16, s16, s17")
    asm("s_mul_i32 s17, %s, %d" % (s(sW), 64 * 896))
    asm("s_add_u32 s16, s16, s17")
    asm("s_lshl_b32 s17, %s, 14" % s(sW))
    for p in range(16):
        asm("s_add_u32 m0, s17, %d" % (p * 1024))
        asm("s_add_u32 s18, s16, %d" % (p * 4 * 896))
        asm("buffer_load_dwordx4 v5, s[12:15], s18 offen lds")
    asm("s_waitcnt vmcnt(0)")
    asm("s_barrier")
    asm("v_lshlrev_b32 v5, 3, v4")
    asm("v_bfe_u32 v6, v1, 2, 2")
    asm("v_add_u32 v5, v5, v6")
    asm("v_lshlrev_b32 v5, 8, v5")
    asm("v_and_b32 v6, 3, v1")
    asm("v_lshl_add_u32 v5, v6, 3, v5")
    cnt = 0
    for t in range(7):
        for ks in range(8):
            for rd in range(2):
                asm("ds_read_b64_tr_b16 %s, v5 offset:%d" % (v(VB + 32 * t + 4 * ks + 2 * rd, 2), ks * 8192 + rd * 1024 + t * 32))
                cnt += 1
                if cnt % 8 == 0: asm("s_waitcnt lgkmcnt(4)")
    asm("s_waitcnt lgkmcnt(0)")
    asm.label(lB)
    ldone = asm.newlabel("gudone")
    asm("s_cmp_ge_u32 %s, 7" % s(sK))
    asm("s_cbranch_scc1 %s" % ldone)
    asm("v_lshrrev_b32 v5, 2, v3")
    asm("v_lshlrev_b32 v5, 3, v5")
    asm("v_and_b32 v6, 1, v3")
    asm("v_add_u32 v5, v5, v6")
    asm("v_bfe_u32 v6, v3, 1, 1")
    asm("v_lshl_add_u32 v5, v6, 2, v5")
    asm("s_lshl_b32 s16, %s, 6" % s(sK))
    asm("v_add_u32 v5, s16, v5")
    asm("v_lshlrev_b32 v5, 13, v5")
    asm("v_lshl_add_u32 v5, v4, 4, v5")
    asm("s_lshl_b32 s17, %s, 9" % s(sH))
    asm("v_lshlrev_b32 v7, 4, v1")
    for u in range(2):
        for tau in range(2):
            asm("s_add_u32 s18, s17, %d" % ((32 * u + 2 * tau) * 8192))
            for ks in range(8):
                asm("buffer_load_dwordx4 %s, v5, s[8:11], s18 offen offset:%d" % (a(32 * (2 * u + tau) + 4 * ks, 4), ks * 64))
    asm("s_waitcnt vmcnt(0)")
    for u in range(2):
        for t in range(7):
            for tau in range(2):
                for ks in range(8):
                    c = "0" if ks == 0 else v(8 + 4 * tau, 4)
                    asm("v_mfma_f32_16x16x32_bf16 %s, %s, %s, %s" % (v(8 + 4 * tau, 4), a(32 * (2 * u + tau) + 4 * ks, 4), v(VB + 32 * t + 4 * ks, 4), c))
            asm("s_nop 7")
            asm("v_cvt_pk_bf16_f32 v16, v8, v9"); asm("v_cvt_pk_bf16_f32 v17, v10, v11")
            asm("v_cvt_pk_bf16_f32 v18, v12, v13"); asm("v_cvt_pk_bf16_f32 v19, v14, v15")
            lu2 = asm.newlabel("guU2"); le = asm.newlabel("guE")
            asm("s_cmp_eq_u32 %s, 1" % s(sMat))
            asm("s_cbranch_scc1 %s" % lu2)
            asm("s_lshl_b32 s18, %s, 2" % s(sH))
            asm("s_add_u32 s18, s18, %s" % s(sQ))
            asm("s_mul_i32 s18, s18, 49")
            asm("s_add_u32 s18, s18, %s" % s(sK))
            asm("s_add_u32 s18, s18, %d" % (7 * t))
            asm("s_lshl_b32 s18, s18, 11")
            asm("s_add_u32 s18, s18, %d" % (L.GF + u * 1024))
            asm("s_branch %s" % le)
            asm.label(lu2)
            asm("s_mul_i32 s18, %s, 7" % s(sQ))
            asm("s_add_u32 s18, s18, %d" % t)
            asm("s_lshr_b32 s19, s18, 1")
            asm("s_lshl_b32 s19, s19, 2")
            asm("s_lshr_b32 s20, %s, 2" % s(sH))
            asm("s_add_u32 s19, s19, s20")
            asm("s_lshl_b32 s19, s19, 3")
            asm("s_and_b32 s18, s18, 1")
            asm("s_lshl_b32 s18, s18, 2")
            asm("s_add_u32 s19, s19, s18")
            asm("s_and_b32 s20, %s, 1" % s(sH))
            asm("s_lshl_b32 s20, s20, 1")
            asm("s_bfe_u32 s18, %s, 0x10001" % s(sH))
            asm("s_add_u32 s20, s20, s18")
            asm("s_add_u32 s19, s19, s20")
            asm("s_mul_i32 s19, s19, 7")
            asm("s_add_u32 s19, s19, %s" % s(sK))
            asm("s_lshl_b32 s18, s19, 11")
            asm("s_add_u32 s18, s18, %d" % (L.UF + u * 1024))
            asm.label(le)
            asm("buffer_store_dwordx4 v[16:19], v7, %s, s18 offen" % WS)
            asm("s_nop 1")
    asm.label(ldone)

def ws_setup(asm):
    asm("s_load_dwordx2 s[4:5], s[0:1], %d" % A_WS)
    asm("s_waitcnt lgkmcnt(0)")
    asm("s_and_b32 s5, s5, 0xffff")
    asm("s_mov_b32 s6, 0x10000000")
    asm("s_mov_b32 s7, 0x20000")

def kernel_head(asm, name, ntask):
    asm(".p2align 8")
    asm(".type %s,@function" % name)
    asm.label(name)
    asm("s_cmp_ge_u32 s2, %d" % ntask)
    asm("s_cbranch_scc1 %s_end" % name)
    ws_setup(asm)
def kernel_tail(asm, name):
    asm.label(name + "_end")
    asm("s_endpgm")
```

```python
from asmlib import *
import layout as L

S_SRD = 4
S_ID = 8
S_W = 9
S_STEP = 10
S_TO = 11
S_TMP = 12
S_MB = 13
S_PB = 14
S_HF = 15
S_TMP2 = 16
S_ZX = 17
S_WX = 18
S_MX = 19
S_DBG = 20
S_MEM0 = 22
S_SRD2 = 24
S_EVEN = 28
S_MEMM = 30
S_M8 = 32
S_SC = 34
S_HX = 35
S_T0 = 36
S_T1 = 38
S_HXO = 40
TIMEOUT = 400000

SRD = s(S_SRD, 4)

S_MT = 0
S_TT = 8192
S_SB = 16384
S_HX0 = 32768
S_HX1 = 65536
V_MT = 0
V_RB = 8192
V_UL = 16384

def smf(asm, d, av, b, idx):
    asm("v_smfmac_f32_16x16x64_bf16 %s, %s, %s, %s" % (v(d, 4), v(av, 4), b, v(idx)))

def lane_consts(asm, vl, t0, t1):
    pass

def emit_poll_M(asm, vP, vOff, vOff2, vT, tag):
    lp = asm.newlabel("pollM"); ld = asm.newlabel("pollMd")
    asm("s_mov_b32 %s, 0" % s(S_TO))
    asm.label(lp)
    asm("buffer_load_dwordx4 %s, %s, %s, %s offen sc1" % (v(vP, 4), v(vOff), SRD, s(S_MB)))
    asm("buffer_load_dwordx4 %s, %s, %s, %s offen sc1" % (v(vP + 4, 4), v(vOff2), SRD, s(S_MB)))
    asm("s_waitcnt vmcnt(0)")
    asm("v_max3_u32 %s, %s, %s, %s" % (v(vT), v(vP), v(vP + 1), v(vP + 2)))
    asm("v_max3_u32 %s, %s, %s, %s" % (v(vT + 1), v(vP + 3), v(vP + 4), v(vP + 5)))
    asm("v_max3_u32 %s, %s, %s, %s" % (v(vT), v(vT), v(vP + 6), v(vP + 7)))
    asm("v_max_u32 %s, %s, %s" % (v(vT), v(vT), v(vT + 1)))
    asm("v_cmp_eq_u32 vcc, -1, %s" % v(vT))
    asm("s_cbranch_vccz %s" % ld)
    asm("s_add_u32 %s, %s, 1" % (s(S_TO), s(S_TO)))
    asm("s_cmp_lt_u32 %s, %d" % (s(S_TO), TIMEOUT))
    asm("s_cbranch_scc1 %s" % lp)
    asm("s_branch L_abort")
    asm.label(ld)

def tr_pattern(asm, vl, vout, vt0, vt1):
    asm("v_lshrrev_b32 %s, 4, %s" % (v(vout), v(vl)))
    asm("v_lshlrev_b32 %s, 4, %s" % (v(vout), v(vout)))
    asm("v_bfe_u32 %s, %s, 3, 1" % (v(vt0), v(vl)))
    asm("v_lshl_add_u32 %s, %s, 2, %s" % (v(vout), v(vt0), v(vout)))
    asm("v_bfe_u32 %s, %s, 1, 1" % (v(vt0), v(vl)))
    asm("v_lshl_add_u32 %s, %s, 1, %s" % (v(vout), v(vt0), v(vout)))
    asm("v_bfe_u32 %s, %s, 2, 1" % (v(vt0), v(vl)))
    asm("v_add_u32 %s, %s, %s" % (v(vout), v(vt0), v(vout)))
    asm("v_lshlrev_b32 %s, 4, %s" % (v(vout), v(vout)))
    asm("v_and_b32 %s, 1, %s" % (v(vt0), v(vl)))
    asm("v_lshl_add_u32 %s, %s, 3, %s" % (v(vout), v(vt0), v(vout)))

def emit_common_poll_offsets(asm, vl, vOff, vOff2, vt):
    asm("s_mul_i32 %s, %s, 112" % (s(S_TMP), s(S_W)))
    asm("v_add_u32 %s, %s, %s" % (v(vOff), s(S_TMP), v(vl)))
    asm("v_lshlrev_b32 %s, 4, %s" % (v(vOff), v(vOff)))
    asm("v_min_u32 %s, 47, %s" % (v(vt), v(vl)))
    asm("v_add_u32 %s, %s, %s" % (v(vt), s(S_TMP), v(vt)))
    asm("v_add_u32 %s, 64, %s" % (v(vt), v(vt)))
    asm("v_lshlrev_b32 %s, 4, %s" % (v(vOff2), v(vt)))

def emit_idx(asm, vl, vidx, vt):
    asm("v_bfe_u32 %s, %s, 3, 1" % (v(vt), v(vl)))
    asm("v_mov_b32 %s, 0x44444444" % v(vidx))
    asm("s_mov_b32 %s, 0xaaaaaaaa" % s(S_TMP))
    asm("v_mul_lo_u32 %s, %s, %s" % (v(vt), v(vt), s(S_TMP)))
    asm("v_or_b32 %s, %s, %s" % (v(vidx), v(vidx), v(vt)))

def stamp(asm, sreg):
    asm("s_memtime %s" % s(sreg, 2))

PROF = False
S_PS = 44
S_PA = 60
def pstamp(asm, i, mode=1):
    if PROF == mode: asm("s_memtime %s" % s(S_PS + 2 * i, 2))
def pinit(asm):
    if PROF:
        for i in range(8): asm("s_mov_b32 %s, 0" % s(S_PA + i))
def pacc(asm, n):
    if PROF:
        asm("s_waitcnt lgkmcnt(0)")
        for i in range(n):
            asm("s_sub_u32 %s, %s, %s" % (s(S_TMP2), s(S_PS + 2 * (i + 1)), s(S_PS + 2 * i)))
            asm("s_add_u32 %s, %s, %s" % (s(S_PA + i), s(S_PA + i), s(S_TMP2)))
def pout(asm, base, n):
    if PROF:
        l = asm.newlabel("pskip")
        asm("s_or_b32 %s, %s, %s" % (s(S_TMP), s(S_ID), s(S_W)))
        asm("s_cmp_lg_u32 %s, 0" % s(S_TMP))
        asm("s_cbranch_scc1 %s" % l)
        for i in range(n):
            asm("v_mov_b32 v2, %s" % s(S_PA + i))
            asm("v_mov_b32 v3, %d" % (4 * (base + i)))
            asm("global_store_dword v3, v2, %s" % s(S_DBG, 2))
        asm.label(l)

def emit_S(asm, NSTEP=63, timing=False):
    R = Alloc(0, 120)
    vL = R("lane"); vIdx = R("idx"); vOff = R("off"); vOff2 = R("off2")
    vA = R("A", 28, 4)
    vAcc = R("acc", 16, 4)
    vU = R("u", 4, 4)
    vPk = R("pk", 2, 2); vT = R("t", 2, 2)
    vTA = R("TA", 8, 4)
    vXB = R("XB", 16, 4)
    vCB = R("CB", 8, 4)
    vS = R("S", 12, 4)
    vZ = R("zero", 4, 4)
    vTrA = R("trA"); vTrT = R("trT"); vTrC = R("trC"); vXa = R("xa"); vTw = R("tw")
    vSw = R("sw"); vSwC = R("swc"); vSr = R("sr"); vSrM = R("srm"); vPx = R("px"); vPm = R("pm"); vD = R("dma")
    def G(t, k):
        f = t * 7 + k
        return a(8 * f, 8) if f < 32 else v(120 + 8 * (f - 32), 8)
    asm.c("===== S role =====")
    asm("v_and_b32 %s, 63, v0" % v(vL))
    emit_idx(asm, vL, vIdx, vT)
    emit_common_poll_offsets(asm, vL, vOff, vOff2, vT)
    tr_pattern(asm, vL, vTrA, vT, vT + 1)
    asm("s_lshl_b32 %s, %s, 11" % (s(S_TMP), s(S_W)))
    asm("s_add_u32 %s, %s, %d" % (s(S_TMP), s(S_TMP), S_TT))
    asm("v_add_u32 %s, %s, %s" % (v(vTrT), s(S_TMP), v(vTrA)))
    asm("v_lshrrev_b32 %s, 5, %s" % (v(vT), v(vL)))
    asm("v_lshlrev_b32 %s, 4, %s" % (v(vT), v(vT)))
    asm("v_and_b32 %s, 15, %s" % (v(vT + 1), v(vL)))
    asm("v_add_u32 %s, %s, %s" % (v(vT), v(vT), v(vT + 1)))
    asm("v_lshlrev_b32 %s, 4, %s" % (v(vTw), v(vT)))
    asm("v_bfe_u32 %s, %s, 4, 1" % (v(vT + 1), v(vL)))
    asm("v_lshl_add_u32 %s, %s, 3, %s" % (v(vTw), v(vT + 1), v(vTw)))
    asm("v_add_u32 %s, %s, %s" % (v(vTw), s(S_TMP), v(vTw)))
    asm("v_lshlrev_b32 %s, 4, %s" % (v(vSw), v(vT)))
    asm("v_mul_u32_u24 %s, %d, %s" % (v(vPk), 4 * 768, v(vT + 1)))
    asm("v_add_u32 %s, %s, %s" % (v(vSw), v(vSw), v(vPk)))
    asm("s_lshl_b32 %s, %s, 2" % (s(S_TMP2), s(S_W)))
    asm("s_add_u32 %s, %s, %d" % (s(S_TMP2), s(S_TMP2), S_SB))
    asm("v_add_u32 %s, %s, %s" % (v(vSw), s(S_TMP2), v(vSw)))
    asm("v_and_b32 %s, 15, %s" % (v(vSwC), v(vL)))
    asm("v_add_u32 %s, 32, %s" % (v(vSwC), v(vSwC)))
    asm("v_lshlrev_b32 %s, 4, %s" % (v(vSwC), v(vSwC)))
    asm("v_add_u32 %s, %s, %s" % (v(vSwC), v(vSwC), v(vPk)))
    asm("v_lshrrev_b32 %s, 5, %s" % (v(vPk + 1), v(vL)))
    asm("v_mul_u32_u24 %s, %d, %s" % (v(vPk + 1), 8 * 768, v(vPk + 1)))
    asm("v_add_u32 %s, %s, %s" % (v(vSwC), v(vSwC), v(vPk + 1)))
    asm("v_add_u32 %s, %s, %s" % (v(vSwC), s(S_TMP2), v(vSwC)))
    asm("v_lshrrev_b32 %s, 4, %s" % (v(vT), v(vL)))
    asm("v_lshlrev_b32 %s, 3, %s" % (v(vT), v(vT)))
    asm("v_bfe_u32 %s, %s, 2, 2" % (v(vT + 1), v(vL)))
    asm("v_add_u32 %s, %s, %s" % (v(vT), v(vT), v(vT + 1)))
    asm("s_mul_i32 %s, %s, 112" % (s(S_TMP), s(S_W)))
    asm("v_add_u32 %s, %s, %s" % (v(vT), s(S_TMP), v(vT)))
    asm("v_lshlrev_b32 %s, 4, %s" % (v(vTrC), v(vT)))
    asm("v_and_b32 %s, 1, %s" % (v(vT), v(vL)))
    asm("v_lshl_add_u32 %s, %s, 3, %s" % (v(vTrC), v(vT), v(vTrC)))
    asm("v_lshrrev_b32 %s, 4, %s" % (v(vT), v(vL)))
    asm("s_mul_i32 %s, %s, 14" % (s(S_TMP), s(S_W)))
    asm("v_add_u32 %s, %s, %s" % (v(vT), s(S_TMP), v(vT)))
    asm("v_lshlrev_b32 %s, 9, %s" % (v(vXa), v(vT)))
    asm("v_and_b32 %s, 15, %s" % (v(vT), v(vL)))
    asm("v_lshl_add_u32 %s, %s, 4, %s" % (v(vXa), v(vT), v(vXa)))
    asm("v_add_u32 %s, %d, %s" % (v(vXa), S_HX0, v(vXa)))
    asm("v_lshrrev_b32 %s, 5, %s" % (v(vT), v(vL)))
    asm("s_lshl_b32 %s, %s, 1" % (s(S_TMP), s(S_W)))
    asm("v_add_u32 %s, %s, %s" % (v(vT), s(S_TMP), v(vT)))
    asm("v_mul_u32_u24 %s, 768, %s" % (v(vT + 1), v(vT)))
    asm("v_add_u32 %s, %d, %s" % (v(vT + 1), S_SB, v(vT + 1)))
    asm("v_and_b32 %s, 31, %s" % (v(vPk), v(vL)))
    asm("v_lshl_add_u32 %s, %s, 4, %s" % (v(vSr), v(vPk), v(vT + 1)))
    asm("v_and_b32 %s, 7, %s" % (v(vPk), v(vL)))
    asm("v_add_u32 %s, 32, %s" % (v(vPk), v(vPk)))
    asm("v_lshl_add_u32 %s, %s, 4, %s" % (v(vSrM), v(vPk), v(vT + 1)))
    asm("v_bfe_u32 %s, %s, 4, 1" % (v(vPk), v(vL)))
    asm("v_lshlrev_b32 %s, 1, %s" % (v(vPk), v(vPk)))
    asm("v_bfe_u32 %s, %s, 1, 1" % (v(vPk + 1), v(vL)))
    asm("v_add_u32 %s, %s, %s" % (v(vPk), v(vPk), v(vPk + 1)))
    asm("v_lshl_add_u32 %s, %s, 3, %s" % (v(vPk), v(vPk), v(vT)))
    asm("v_lshlrev_b32 %s, 4, %s" % (v(vPx), v(vPk)))
    asm("v_bfe_u32 %s, %s, 2, 1" % (v(vPk), v(vL)))
    asm("v_lshl_add_u32 %s, %s, 3, %s" % (v(vPx), v(vPk), v(vPx)))
    asm("v_bfe_u32 %s, %s, 3, 1" % (v(vPk), v(vL)))
    asm("v_lshl_add_u32 %s, %s, 2, %s" % (v(vPx), v(vPk), v(vPx)))
    asm("s_lshl_b32 %s, %s, 9" % (s(S_TMP), s(S_ID)))
    asm("v_add_u32 %s, %s, %s" % (v(vPx), s(S_TMP), v(vPx)))
    asm("v_bfe_u32 %s, %s, 1, 1" % (v(vPk), v(vL)))
    asm("v_lshl_add_u32 %s, %s, 3, %s" % (v(vPk), v(vPk), v(vT)))
    asm("v_lshlrev_b32 %s, 4, %s" % (v(vPm), v(vPk)))
    asm("v_bfe_u32 %s, %s, 2, 1" % (v(vPk), v(vL)))
    asm("v_lshl_add_u32 %s, %s, 3, %s" % (v(vPm), v(vPk), v(vPm)))
    asm("s_lshr_b32 %s, %s, 2" % (s(S_TMP), s(S_ID)))
    asm("s_lshl_b32 %s, %s, 9" % (s(S_TMP), s(S_TMP)))
    asm("s_bfe_u32 %s, %s, 0x10001" % (s(S_TMP2), s(S_ID)))
    asm("s_lshl_b32 %s, %s, 8" % (s(S_TMP2), s(S_TMP2)))
    asm("s_add_u32 %s, %s, %s" % (s(S_TMP), s(S_TMP), s(S_TMP2)))
    asm("s_and_b32 %s, %s, 1" % (s(S_TMP2), s(S_ID)))
    asm("s_lshl_b32 %s, %s, 2" % (s(S_TMP2), s(S_TMP2)))
    asm("s_add_u32 %s, %s, %s" % (s(S_TMP), s(S_TMP), s(S_TMP2)))
    asm("s_add_u32 %s, %s, 8192" % (s(S_TMP), s(S_TMP)))
    asm("v_add_u32 %s, %s, %s" % (v(vPm), s(S_TMP), v(vPm)))
    asm("s_mul_i32 %s, %s, 7168" % (s(S_TMP), s(S_W)))
    asm("v_lshlrev_b32 %s, 4, %s" % (v(vD), v(vL)))
    asm("v_add_u32 %s, %s, %s" % (v(vD), s(S_TMP), v(vD)))
    asm("s_mov_b32 %s, 0x55555555" % s(S_EVEN)); asm("s_mov_b32 %s, 0x55555555" % s(S_EVEN + 1))
    asm("s_mov_b32 %s, 0x55" % s(S_MEMM)); asm("s_mov_b32 %s, 0x55" % s(S_MEMM + 1))
    asm("s_mov_b32 %s, 0xff" % s(S_M8)); asm("s_mov_b32 %s, 0xff" % s(S_M8 + 1))
    asm("s_mov_b32 %s, 0x3db8aa3b" % s(S_SC))
    asm("s_lshl_b32 %s, %s, 2" % (s(S_TMP), s(S_ID)))
    asm("s_add_u32 %s, %s, %s" % (s(S_TMP), s(S_TMP), s(S_W)))
    asm("s_mul_i32 %s, %s, %d" % (s(S_TMP), s(S_TMP), 49 * 2048))
    asm("s_add_u32 %s, %s, %d" % (s(S_TMP), s(S_TMP), L.GF))
    asm("v_lshlrev_b32 %s, 4, %s" % (v(vT), v(vL)))
    for f in range(49):
        for u in range(2):
            dst = a(8 * f + 4 * u, 4) if f < 32 else v(120 + 8 * (f - 32) + 4 * u, 4)
            o = (f % 2) * 2048 + u * 1024
            asm("buffer_load_dwordx4 %s, %s, %s, %s offen offset:%d" % (dst, v(vT), SRD, s(S_TMP), o))
        if f % 2 == 1:
            asm("s_add_u32 %s, %s, 4096" % (s(S_TMP), s(S_TMP)))
        if f % 16 == 15:
            asm("s_waitcnt vmcnt(16)")
    def dma_h(sreg_src, m0base_sreg):
        asm("s_mov_b32 m0, %s" % s(m0base_sreg))
        asm("s_nop 0")
        for p in range(4):
            asm("buffer_load_dwordx4 %s, %s, %s offen offset:%d lds" % (v(vD), SRD, s(sreg_src), p * 1024))
    asm("s_mov_b32 %s, %d" % (s(S_HF), L.HF))
    asm("s_mul_i32 %s, %s, 7168" % (s(S_HXO), s(S_W)))
    asm("s_add_u32 %s, %s, %d" % (s(S_HX), s(S_HXO), S_HX0))
    def dma_issue():
        ops = []
        ops.append("s_mov_b32 m0, %s" % s(S_HX))
        ops.append("s_add_u32 %s, %s, 4096" % (s(S_TMP), s(S_HF)))
        for p in range(4):
            ops.append("buffer_load_dwordx4 %s, %s, %s offen offset:%d lds" % (v(vD), SRD, s(S_HF), p * 1024))
        ops.append("s_add_u32 m0, %s, 4096" % s(S_HX))
        ops.append("s_nop 0")
        for p in range(3):
            ops.append("buffer_load_dwordx4 %s, %s, %s offen offset:%d lds" % (v(vD), SRD, s(S_TMP), p * 1024))
        return ops
    for o in dma_issue(): asm(o)
    asm("s_add_u32 %s, %s, 28672" % (s(S_HF), s(S_HF)))
    asm("s_xor_b32 %s, %s, %d" % (s(S_HX), s(S_HX), S_HX0 ^ S_HX1))
    asm("s_mov_b32 %s, %d" % (s(S_MB), L.MB))
    asm("s_mov_b32 %s, %d" % (s(S_PB), L.PB))
    asm("s_mov_b32 %s, 0" % s(S_STEP))
    for i in range(0, 4, 2): asm("v_mov_b64 %s, 0" % v(vZ + i, 2))
    asm("s_waitcnt vmcnt(0)")
    if timing: stamp(asm, S_T0)
    pinit(asm)
    asm.label("L_S_loop")
    pstamp(asm, 0)
    emit_poll_M(asm, vXB, vOff, vOff2, vT, "S")
    pstamp(asm, 1)
    asm("ds_write_b128 %s, %s offset:%d" % (v(vOff), v(vXB, 4), S_MT))
    asm("ds_write_b128 %s, %s offset:%d" % (v(vOff2), v(vXB + 4, 4), S_MT))
    asm("v_mov_b64 %s, 0" % v(vAcc, 2)); asm("v_mov_b64 %s, 0" % v(vAcc + 2, 2))
    asm("s_waitcnt lgkmcnt(0)")
    asm("s_barrier")
    pstamp(asm, 2)
    pstamp(asm, 0, 2)
    if PROF: asm("s_waitcnt lgkmcnt(0)")
    for k in range(7):
        for rd in range(2):
            asm("ds_read_b64_tr_b16 %s, %s offset:%d" % (v(vA + 4 * k + 2 * rd, 2), v(vTrA), S_MT + k * 1024 + rd * 128))
    aux = {m: [] for m in range(-1, 60)}
    def zero(acc): return ["v_mov_b64 %s, 0" % v(acc, 2), "v_mov_b64 %s, 0" % v(acc + 2, 2)]
    acc = lambda t: vAcc + 4 * (t % 4)
    lds_out = [14]
    d = dma_issue()
    aux[1] += zero(acc(1)); aux[3] += zero(acc(2)); aux[5] += zero(acc(3))
    seq = d + ["s_add_u32 %s, %s, 28672" % (s(S_HF), s(S_HF)), "s_xor_b32 %s, %s, %d" % (s(S_HX), s(S_HX), S_HX0 ^ S_HX1)]
    pos = 7
    for o in seq:
        aux[pos].append(o)
        if len(aux[pos]) >= 2: pos += 1
    for i in range(0, 12, 2):
        aux[14 + i // 2].append("v_mov_b64 %s, 0" % v(vS + i, 2))
    def pair_ops(ta, tb, tcol):
        A_, B_ = acc(ta), acc(tb)
        ops = []
        for i in range(4): ops.append("v_permlane32_swap_b32 %s, %s" % (v(A_ + i), v(B_ + i)))
        for i in range(4): ops.append("v_add_f32 %s, %s, %s" % (v(vU + i), v(A_ + i), v(B_ + i)))
        ops.append("v_cvt_pk_bf16_f32 %s, %s, %s" % (v(vPk), v(vU), v(vU + 1)))
        ops.append("v_cvt_pk_bf16_f32 %s, %s, %s" % (v(vPk + 1), v(vU + 2), v(vU + 3)))
        ops.append("ds_write_b64 %s, %s offset:%d" % (v(vTw), v(vPk, 2), tcol * 256))
        return ops
    def place(ops, start, per=2):
        p = start
        for o in ops:
            while len(aux[p]) >= per: p += 1
            aux[p].append(o)
        return p
    e = place(pair_ops(0, 1, 0), 17)
    e = place(zero(acc(4)) + zero(acc(5)), e)
    xb0 = []
    for tile in range(2):
        for u in range(2):
            xb0.append("ds_read_b128 %s, %s offset:%d" % (v(vXB + 8 * tile + 4 * u, 4), v(vXa), tile * 256 + u * 2048))
    cb0 = []
    for u in range(2):
        for rd in range(2):
            cb0.append("ds_read_b64_tr_b16 %s, %s offset:%d" % (v(vCB + 4 * u + 2 * rd, 2), v(vTrC), S_MT + u * 512 + rd * 64))
    e = place(xb0 + cb0, 25)
    e = place(pair_ops(2, 3, 2), 31)
    e = place(zero(acc(6)), e)
    ta0 = ["ds_read_b64_tr_b16 %s, %s offset:%d" % (v(vTA + 2 * rd, 2), v(vTrT), rd * 128) for rd in range(2)]
    e = place(ta0, e)
    marks = {}
    m = 0
    for t in range(7):
        for k in range(7):
            if t == 0:
                asm("s_waitcnt lgkmcnt(%d)" % (12 - 2 * k))
            smf(asm, acc(t), vA + 4 * k, G(t, k), vIdx)
            marks[m] = asm.mark()
            for o in aux[m]:
                if o.startswith("v_permlane32_swap") :
                    prod = (m // 7) * 7 - 1
                    asm.gap(marks[prod], 8)
                asm(o)
            m += 1
            if m % 7 == 0 and m < 49: pstamp(asm, m // 7, 2)
            if m == 42:
                asm("s_waitcnt lgkmcnt(0)")
                for tile in range(2):
                    smf(asm, vS + 4 * tile, vTA, v(vXB + 8 * tile, 8), vIdx)
                smf(asm, vS + 8, vTA, v(vCB, 8), vIdx)
                for tile in range(2):
                    for u in range(2):
                        aux[42 + 2 * tile + u].append("ds_read_b128 %s, %s offset:%d" % (v(vXB + 8 * tile + 4 * u, 4), v(vXa), 4096 + tile * 256 + u * 2048))
                for u in range(2):
                    for rd in range(2):
                        aux[42 + 2 * u + rd].append("ds_read_b64_tr_b16 %s, %s offset:%d" % (v(vCB + 4 * u + 2 * rd, 2), v(vTrC), S_MT + 1024 + u * 512 + rd * 64))
    pstamp(asm, 3)
    pstamp(asm, 7, 2)
    asm.gap(marks[41], 8)
    for o in pair_ops(4, 5, 4): asm(o)
    asm.gap(marks[48], 8)
    A6 = acc(6)
    for i in range(4): asm("v_permlane32_swap_b32 %s, %s" % (v(A6 + i), v(vZ + i)))
    for i in range(4): asm("v_add_f32 %s, %s, %s" % (v(vU + i), v(A6 + i), v(vZ + i)))
    asm("v_cvt_pk_bf16_f32 %s, %s, %s" % (v(vPk), v(vU), v(vU + 1)))
    asm("v_cvt_pk_bf16_f32 %s, %s, %s" % (v(vPk + 1), v(vU + 2), v(vU + 3)))
    asm("ds_write_b64 %s, %s offset:%d" % (v(vTw), v(vPk, 2), 6 * 256))
    for rd in range(2):
        asm("ds_read_b64_tr_b16 %s, %s offset:%d" % (v(vTA + 4 + 2 * rd, 2), v(vTrT), 1024 + rd * 128))
    for i in range(0, 4, 2): asm("v_mov_b64 %s, 0" % v(vZ + i, 2))
    asm("s_waitcnt lgkmcnt(0)")
    for tile in range(2):
        smf(asm, vS + 4 * tile, vTA + 4, v(vXB + 8 * tile, 8), vIdx)
    smf(asm, vS + 8, vTA + 4, v(vCB, 8), vIdx)
    mk = asm.mark()
    asm.gap(mk, 8)
    for i in range(4): asm("v_permlane32_swap_b32 %s, %s" % (v(vS + i), v(vS + 4 + i)))
    for i in range(4): asm("v_permlane32_swap_b32 %s, %s" % (v(vS + 8 + i), v(vZ + i)))
    for i in range(4): asm("v_add_f32 %s, %s, %s" % (v(vU + i), v(vS + i), v(vS + 4 + i)))
    asm("ds_write2st64_b32 %s, %s, %s offset0:0 offset1:3" % (v(vSw), v(vU), v(vU + 1)))
    asm("ds_write2st64_b32 %s, %s, %s offset0:6 offset1:9" % (v(vSw), v(vU + 2), v(vU + 3)))
    for i in range(4): asm("v_add_f32 %s, %s, %s" % (v(vS + i), v(vS + 8 + i), v(vZ + i)))
    asm("ds_write2st64_b32 %s, %s, %s offset0:0 offset1:3" % (v(vSwC), v(vS), v(vS + 1)))
    asm("ds_write2st64_b32 %s, %s, %s offset0:6 offset1:9" % (v(vSwC), v(vS + 2), v(vS + 3)))
    for i in range(0, 4, 2): asm("v_mov_b64 %s, 0" % v(vZ + i, 2))
    asm("s_waitcnt lgkmcnt(0)")
    pstamp(asm, 4)
    asm("s_barrier")
    pstamp(asm, 5)
    if PROF: asm("s_waitcnt lgkmcnt(0)")
    sx = vAcc; sm = vAcc + 4; X = vAcc + 8; M_ = vAcc + 9; MXr = vAcc + 10; TT = vAcc + 11; EX = vAcc + 12; EM = vAcc + 13; SU = vAcc + 14; T2 = vAcc + 15
    asm("ds_read_b128 %s, %s" % (v(sx, 4), v(vSr)))
    asm("ds_read_b128 %s, %s" % (v(sm, 4), v(vSrM)))
    asm("s_waitcnt lgkmcnt(1)")
    asm("v_add_f32 %s, %s, %s" % (v(sx), v(sx), v(sx + 1)))
    asm("v_add_f32 %s, %s, %s" % (v(sx + 2), v(sx + 2), v(sx + 3)))
    asm("s_waitcnt lgkmcnt(0)")
    asm("v_add_f32 %s, %s, %s" % (v(sm), v(sm), v(sm + 1)))
    asm("v_add_f32 %s, %s, %s" % (v(sm + 2), v(sm + 2), v(sm + 3)))
    asm("v_add_f32 %s, %s, %s" % (v(X), v(sx), v(sx + 2)))
    asm("v_add_f32 %s, %s, %s" % (v(M_), v(sm), v(sm + 2)))
    asm("v_mov_b32 %s, 0xff800000" % v(TT))
    asm("v_cndmask_b32 %s, %s, %s, %s" % (v(M_), v(TT), v(M_), s(S_M8, 2)))
    asm("v_max_f32 %s, %s, %s" % (v(MXr), v(X), v(M_)))
    def reduce(op, r, t):
        for dpp in ["quad_perm:[1,0,3,2]", "quad_perm:[2,3,0,1]", "row_half_mirror", "row_mirror"]:
            asm("s_nop 1")
            asm("%s_dpp %s, %s, %s %s row_mask:0xf bank_mask:0xf" % (op, v(r), v(r), v(r), dpp))
        asm("v_mov_b32 %s, %s" % (v(t), v(r)))
        asm("s_nop 1")
        asm("v_permlane16_swap_b32 %s, %s" % (v(r), v(t)))
        asm("%s %s, %s, %s" % (op, v(r), v(r), v(t)))
    reduce("v_max_f32", MXr, TT)
    asm("v_mul_f32 %s, %s, %s" % (v(MXr), s(S_SC), v(MXr)))
    asm("v_fma_f32 %s, %s, %s, -%s" % (v(EX), v(X), s(S_SC), v(MXr)))
    asm("v_fma_f32 %s, %s, %s, -%s" % (v(EM), v(M_), s(S_SC), v(MXr)))
    asm("v_exp_f32 %s, %s" % (v(EX), v(EX)))
    asm("v_exp_f32 %s, %s" % (v(EM), v(EM)))
    asm("s_nop 0")
    asm("v_add_f32 %s, %s, %s" % (v(SU), v(EX), v(EM)))
    reduce("v_add_f32", SU, TT)
    asm("v_rcp_f32 %s, %s" % (v(SU), v(SU)))
    asm("s_nop 0")
    asm("v_mul_f32 %s, %s, %s" % (v(EX), v(EX), v(SU)))
    asm("v_mul_f32 %s, %s, %s" % (v(EM), v(EM), v(SU)))
    asm("s_nop 0")
    asm("v_mov_b32_dpp %s, %s quad_perm:[1,0,3,2] row_mask:0xf bank_mask:0xf" % (v(TT), v(EX)))
    asm("v_mov_b32_dpp %s, %s quad_perm:[1,0,3,2] row_mask:0xf bank_mask:0xf" % (v(T2), v(EM)))
    asm("v_cvt_pk_bf16_f32 %s, %s, %s" % (v(EX), v(EX), v(TT)))
    asm("v_cvt_pk_bf16_f32 %s, %s, %s" % (v(EM), v(EM), v(T2)))
    asm("s_mov_b64 exec, %s" % s(S_EVEN, 2))
    asm("buffer_store_dword %s, %s, %s, %s offen" % (v(EX), v(vPx), SRD, s(S_PB)))
    asm("s_mov_b64 exec, %s" % s(S_MEMM, 2))
    asm("buffer_store_dword %s, %s, %s, %s offen" % (v(EM), v(vPm), SRD, s(S_PB)))
    asm("s_mov_b64 exec, -1")
    pstamp(asm, 6)
    pacc(asm, 6 if PROF == 1 else 7)
    asm("v_xor_b32 %s, %d, %s" % (v(vXa), S_HX0 ^ S_HX1, v(vXa)))
    asm("s_add_u32 %s, %s, 7168" % (s(S_MB), s(S_MB)))
    asm("s_add_u32 %s, %s, 10240" % (s(S_PB), s(S_PB)))
    asm("s_add_u32 %s, %s, 1" % (s(S_STEP), s(S_STEP)))
    asm("s_cmp_lt_u32 %s, %d" % (s(S_STEP), NSTEP))
    asm("s_cbranch_scc1 L_S_loop")
    if timing:
        stamp(asm, S_T1)
        emit_time_out(asm, 0)
        pout(asm, 20, 7)
    asm("s_branch L_done")
    return R

def emit_time_out(asm, slot):
    l = asm.newlabel("tskip")
    asm("s_waitcnt lgkmcnt(0)")
    asm("s_sub_u32 %s, %s, %s" % (s(S_T1), s(S_T1), s(S_T0)))
    asm("s_or_b32 %s, %s, %s" % (s(S_TMP), s(S_ID), s(S_W)))
    asm("s_cmp_lg_u32 %s, 0" % s(S_TMP))
    asm("s_cbranch_scc1 %s" % l)
    asm("v_mov_b32 v2, %s" % s(S_T1))
    asm("v_mov_b32 v3, %d" % (64 + 4 * slot))
    asm("global_store_dword v3, v2, %s" % s(S_DBG, 2))
    asm.label(l)

def emit_V(asm, NSTEP=63, timing=False):
    R = Alloc(0, 176)
    vL = R("lane"); vIdx = R("idx"); vOff = R("off"); vOff2 = R("off2")
    vA = R("A", 28, 4)
    vAcc = R("acc", 16, 4)
    vU = R("u", 4, 4)
    vT = R("t", 2, 2)
    vWf = R("wf", 16, 4)
    vZx = R("zx", 32, 4)
    vUb = R("ub", 32, 4)
    vTrA = R("trA"); vUa = R("ua"); vZo = R("zo"); vPo = R("po"); vPo2 = R("po2"); vRw = R("rw"); vMo = R("mo"); vWo = R("wo")
    vP = vA
    LDS_TILES = [3, 7]
    reg_tiles = [t for t in range(8) if t not in LDS_TILES]
    def U(t, k):
        f = reg_tiles.index(t) * 7 + k
        return a(8 * f, 8) if f < 32 else v(176 + 8 * (f - 32), 8)
    HH = [0, 2, 1, 3]
    asm.c("===== V role =====")
    asm("v_and_b32 %s, 63, v0" % v(vL))
    emit_idx(asm, vL, vIdx, vT)
    emit_common_poll_offsets(asm, vL, vOff, vOff2, vT)
    tr_pattern(asm, vL, vTrA, vT, vT + 1)
    asm("s_mul_i32 %s, %s, %d" % (s(S_TMP), s(S_W), 14 * 2048))
    asm("s_add_u32 %s, %s, %d" % (s(S_TMP), s(S_TMP), V_UL))
    asm("v_lshlrev_b32 %s, 4, %s" % (v(vT), v(vL)))
    asm("v_add_u32 %s, %s, %s" % (v(vUa), s(S_TMP), v(vT)))
    asm("s_mul_i32 %s, %s, %d" % (s(S_TMP), s(S_W), 4 * 28 * 1024))
    asm("s_lshl_b32 %s, %s, 11" % (s(S_TMP2), s(S_ID)))
    asm("s_add_u32 %s, %s, %s" % (s(S_TMP), s(S_TMP), s(S_TMP2)))
    asm("v_add_u32 %s, %s, %s" % (v(vZo), s(S_TMP), v(vT)))
    asm("s_lshl_b32 %s, %s, 11" % (s(S_TMP), s(S_W)))
    asm("v_add_u32 %s, %s, %s" % (v(vPo), s(S_TMP), v(vT)))
    asm("v_and_b32 %s, 31, %s" % (v(vPo2), v(vL)))
    asm("v_lshlrev_b32 %s, 4, %s" % (v(vPo2), v(vPo2)))
    asm("s_lshl_b32 %s, %s, 9" % (s(S_TMP), s(S_W)))
    asm("s_add_u32 %s, %s, 8192" % (s(S_TMP), s(S_TMP)))
    asm("v_add_u32 %s, %s, %s" % (v(vPo2), s(S_TMP), v(vPo2)))
    asm("s_lshl_b32 %s, %s, 10" % (s(S_TMP), s(S_W)))
    asm("s_add_u32 %s, %s, %d" % (s(S_TMP), s(S_TMP), V_RB))
    asm("v_add_u32 %s, %s, %s" % (v(vRw), s(S_TMP), v(vT)))
    asm("v_lshrrev_b32 %s, 5, %s" % (v(vMo), v(vL)))
    asm("v_lshlrev_b32 %s, 4, %s" % (v(vMo), v(vMo)))
    asm("v_and_b32 %s, 15, %s" % (v(vT + 1), v(vL)))
    asm("v_add_u32 %s, %s, %s" % (v(vMo), v(vMo), v(vT + 1)))
    asm("s_lshl_b32 %s, %s, 5" % (s(S_TMP), s(S_ID)))
    asm("v_add_u32 %s, %s, %s" % (v(vMo), s(S_TMP), v(vMo)))
    asm("v_bfe_u32 %s, %s, 4, 1" % (v(vT + 1), v(vL)))
    lskip = asm.newlabel("m0skip")
    asm("s_cmp_lg_u32 %s, 0" % s(S_W))
    asm("s_cbranch_scc1 %s" % lskip)
    asm("v_mul_u32_u24 %s, %d, %s" % (v(vU), 4 * 896, v(vT + 1)))
    asm("v_lshl_add_u32 %s, %s, 1, %s" % (v(vU), v(vMo), v(vU)))
    asm("s_mov_b32 %s, %s" % (s(S_SRD2), s(S_MEM0)))
    asm("s_and_b32 %s, %s, 0xffff" % (s(S_SRD2 + 1), s(S_MEM0 + 1)))
    asm("s_mov_b32 %s, 7168" % s(S_SRD2 + 2))
    asm("s_mov_b32 %s, 0x20000" % s(S_SRD2 + 3))
    for i in range(4):
        asm("buffer_load_ushort %s, %s, %s, 0 offen offset:%d" % (v(vAcc + i), v(vU), s(S_SRD2, 4), i * 896))
    asm("s_waitcnt vmcnt(0)")
    asm("v_lshl_or_b32 %s, %s, 16, %s" % (v(vAcc + 4), v(vAcc + 1), v(vAcc)))
    asm("v_lshl_or_b32 %s, %s, 16, %s" % (v(vAcc + 5), v(vAcc + 3), v(vAcc + 2)))
    asm("v_lshlrev_b32 %s, 4, %s" % (v(vU + 1), v(vMo)))
    asm("v_lshl_add_u32 %s, %s, 3, %s" % (v(vU + 1), v(vT + 1), v(vU + 1)))
    asm("s_mov_b32 %s, %d" % (s(S_TMP), L.MB))
    asm("buffer_store_dwordx2 %s, %s, %s, %s offen" % (v(vAcc + 4, 2), v(vU + 1), SRD, s(S_TMP)))
    asm("s_mov_b32 %s, %d" % (s(S_TMP), L.MX))
    asm("buffer_store_dwordx2 %s, %s, %s, %s offen sc1" % (v(vAcc + 4, 2), v(vU + 1), SRD, s(S_TMP)))
    asm.label(lskip)
    asm("v_lshlrev_b32 %s, 4, %s" % (v(vMo), v(vMo)))
    asm("v_lshl_add_u32 %s, %s, 3, %s" % (v(vMo), v(vT + 1), v(vMo)))
    asm("s_lshl_b32 %s, %s, 3" % (s(S_TMP), s(S_ID)))
    asm("s_lshl_b32 %s, %s, 1" % (s(S_TMP2), s(S_W)))
    asm("s_add_u32 %s, %s, %s" % (s(S_TMP), s(S_TMP), s(S_TMP2)))
    asm("s_lshl_b32 %s, %s, 10" % (s(S_TMP), s(S_TMP)))
    asm("v_lshlrev_b32 %s, 4, %s" % (v(vT), v(vL)))
    asm("v_add_u32 %s, %s, %s" % (v(vWo), s(S_TMP), v(vT)))
    asm("s_lshl_b32 %s, %s, 2" % (s(S_TMP), s(S_ID)))
    asm("s_add_u32 %s, %s, %s" % (s(S_TMP), s(S_TMP), s(S_W)))
    asm("s_mul_i32 %s, %s, %d" % (s(S_TMP), s(S_TMP), 56 * 2048))
    asm("s_add_u32 %s, %s, %d" % (s(S_TMP), s(S_TMP), L.UF))
    asm("s_mul_i32 %s, %s, %d" % (s(S_TMP2), s(S_W), 14 * 2048))
    asm("s_add_u32 %s, %s, %d" % (s(S_TMP2), s(S_TMP2), V_UL))
    cnt = 0
    for t in range(8):
        for k in range(7):
            if t in LDS_TILES:
                li = LDS_TILES.index(t) * 7 + k
                asm("s_add_u32 m0, %s, %d" % (s(S_TMP2), li * 2048))
                asm("s_nop 0")
                for u in range(2):
                    asm("buffer_load_dwordx4 %s, %s, %s offen offset:%d lds" % (v(vT), SRD, s(S_TMP), u * 1024))
            else:
                f = reg_tiles.index(t) * 7 + k
                for u in range(2):
                    dst = a(8 * f + 4 * u, 4) if f < 32 else v(176 + 8 * (f - 32) + 4 * u, 4)
                    asm("buffer_load_dwordx4 %s, %s, %s, %s offen offset:%d" % (dst, v(vT), SRD, s(S_TMP), u * 1024))
            asm("s_add_u32 %s, %s, 2048" % (s(S_TMP), s(S_TMP)))
            cnt += 1
            if cnt % 16 == 0: asm("s_waitcnt vmcnt(16)")
    for i in [4, 6, 12, 14]: asm("v_mov_b64 %s, 0" % v(vWf + i, 2))
    asm("s_mov_b32 %s, %d" % (s(S_MB), L.MB))
    asm("s_mov_b32 %s, %d" % (s(S_PB), L.PB))
    asm("s_mov_b32 %s, %d" % (s(S_ZX), L.ZX))
    asm("s_mov_b32 %s, %d" % (s(S_WX), L.WX))
    asm("s_mov_b32 %s, %d" % (s(S_MX), L.MX + 7168))
    asm("s_mov_b32 %s, 0" % s(S_STEP))
    asm("s_waitcnt vmcnt(0)")
    asm("s_barrier")
    if timing: stamp(asm, S_T0)
    pinit(asm)
    asm.label("L_V_loop")
    pstamp(asm, 0)
    emit_poll_M(asm, vUb, vOff, vOff2, vT, "V")
    pstamp(asm, 1)
    asm("ds_write_b128 %s, %s offset:%d" % (v(vOff), v(vUb, 4), V_MT))
    asm("ds_write_b128 %s, %s offset:%d" % (v(vOff2), v(vUb + 4, 4), V_MT))
    asm("v_mov_b64 %s, 0" % v(vAcc, 2)); asm("v_mov_b64 %s, 0" % v(vAcc + 2, 2))
    asm("s_waitcnt lgkmcnt(0)")
    asm("s_barrier")
    pstamp(asm, 0, 2)
    if PROF == 2: asm("s_waitcnt lgkmcnt(0)")
    for k in range(7):
        for rd in range(2):
            asm("ds_read_b64_tr_b16 %s, %s offset:%d" % (v(vA + 4 * k + 2 * rd, 2), v(vTrA), V_MT + k * 1024 + rd * 128))
    lz = asm.newlabel("nozx")
    asm("s_cmp_ge_u32 %s, %d" % (s(S_STEP), NSTEP))
    asm("s_cbranch_scc1 %s" % lz)
    for c in range(2):
        for u in range(2):
            asm("s_add_u32 %s, %s, %d" % (s(S_TMP), s(S_ZX), (2 * c + u) * 28 * 1024))
            for ft in range(2):
                asm("buffer_load_dwordx4 %s, %s, %s, %s offen offset:%d" % (v(vZx + 16 * c + 8 * ft + 4 * u, 4), v(vZo), SRD, s(S_TMP), ft * 1024))
    asm.label(lz)
    aux = {m: [] for m in range(0, 64)}
    acc = lambda t: vAcc + 4 * (t % 4)
    def zero(ac): return ["v_mov_b64 %s, 0" % v(ac, 2), "v_mov_b64 %s, 0" % v(ac + 2, 2)]
    def place(ops, start, per=2):
        p = start
        for o in ops:
            while len(aux[p]) >= per: p += 1
            aux[p].append(o)
        return p
    def pair_ops(ta, tb, dst):
        A_, B_ = acc(ta), acc(tb)
        ops = []
        for i in range(4): ops.append("v_permlane32_swap_b32 %s, %s" % (v(A_ + i), v(B_ + i)))
        for i in range(4): ops.append("v_add_f32 %s, %s, %s" % (v(vU + i), v(A_ + i), v(B_ + i)))
        ops.append("v_cvt_pk_bf16_f32 %s, %s, %s" % (v(dst), v(vU), v(vU + 1)))
        ops.append("v_cvt_pk_bf16_f32 %s, %s, %s" % (v(dst + 1), v(vU + 2), v(vU + 3)))
        return ops
    place(zero(acc(1)) + zero(acc(2)) + zero(acc(3)), 1)
    e = place(pair_ops(0, 1, vWf), 17); place(zero(acc(4)) + zero(acc(5)), e)
    e = place(pair_ops(2, 3, vWf + 2), 31); place(zero(acc(6)) + zero(acc(7)), e)
    e = place(pair_ops(4, 5, vWf + 8), 45)
    def ubuf(k): return vUb + 8 * (k % 4)
    def uread(t, k):
        li = LDS_TILES.index(t) * 7 + k
        return ["ds_read_b128 %s, %s offset:%d" % (v(ubuf(k) + 4 * u, 4), v(vUa), li * 2048 + u * 1024) for u in range(2)]
    pre = {}
    for t in LDS_TILES:
        for k in range(7):
            mm = 7 * t + k - 3
            aux[mm] = aux[mm] + uread(t, k)
    marks = {}
    m = 0
    for t in range(8):
        for k in range(7):
            if t == 0:
                asm("s_waitcnt lgkmcnt(%d)" % (12 - 2 * k))
            if t in LDS_TILES:
                younger = min(2, 6 - k) * 2
                asm("s_waitcnt lgkmcnt(%d)" % younger)
                B = v(ubuf(k), 8)
            else:
                B = U(t, k)
            smf(asm, acc(t), vA + 4 * k, B, vIdx)
            marks[m] = asm.mark()
            for o in aux[m]:
                if o.startswith("v_permlane32_swap"):
                    prod = (m // 7) * 7 - 1
                    asm.gap(marks[prod], 8)
                asm(o)
            m += 1
            if m % 7 == 0 and m < 56: pstamp(asm, m // 7, 2)
    asm.gap(marks[55], 8)
    for o in pair_ops(6, 7, vWf + 10): asm(o)
    pstamp(asm, 2)
    for ft in range(2):
        asm("buffer_store_dwordx4 %s, %s, %s, %s offen offset:%d sc1" % (v(vWf + 8 * ft, 4), v(vWo), SRD, s(S_WX), ft * 1024))
    asm("s_cmp_ge_u32 %s, %d" % (s(S_STEP), NSTEP))
    asm("s_cbranch_scc1 L_V_end")
    for i in range(0, 8, 2): asm("v_mov_b64 %s, 0" % v(vAcc + i, 2))
    lp = asm.newlabel("pollP"); ld = asm.newlabel("pollPd")
    asm("s_mov_b32 %s, 0" % s(S_TO))
    asm.label(lp)
    asm("buffer_load_dwordx4 %s, %s, %s, %s offen sc1" % (v(vP, 4), v(vPo), SRD, s(S_PB)))
    asm("buffer_load_dwordx4 %s, %s, %s, %s offen offset:1024 sc1" % (v(vP + 4, 4), v(vPo), SRD, s(S_PB)))
    asm("buffer_load_dwordx4 %s, %s, %s, %s offen sc1" % (v(vP + 8, 4), v(vPo2), SRD, s(S_PB)))
    asm("s_waitcnt vmcnt(0)")
    asm("v_max3_u32 %s, %s, %s, %s" % (v(vT), v(vP), v(vP + 1), v(vP + 2)))
    asm("v_max3_u32 %s, %s, %s, %s" % (v(vT + 1), v(vP + 3), v(vP + 4), v(vP + 5)))
    asm("v_max3_u32 %s, %s, %s, %s" % (v(vT), v(vT), v(vP + 6), v(vP + 7)))
    asm("v_max3_u32 %s, %s, %s, %s" % (v(vT + 1), v(vT + 1), v(vP + 8), v(vP + 9)))
    asm("v_max3_u32 %s, %s, %s, %s" % (v(vT), v(vT), v(vP + 10), v(vP + 11)))
    asm("v_max_u32 %s, %s, %s" % (v(vT), v(vT), v(vT + 1)))
    asm("v_cmp_eq_u32 vcc, -1, %s" % v(vT))
    asm("s_cbranch_vccz %s" % ld)
    asm("s_add_u32 %s, %s, 1" % (s(S_TO), s(S_TO)))
    asm("s_cmp_lt_u32 %s, %d" % (s(S_TO), TIMEOUT))
    asm("s_cbranch_scc1 %s" % lp)
    asm("s_branch L_abort")
    asm.label(ld)
    pstamp(asm, 3)
    for c in range(2):
        for ft in range(2):
            smf(asm, vAcc + 4 * ft, vP + 4 * c, v(vZx + 16 * c + 8 * ft, 8), vIdx)
    for ft in range(2):
        smf(asm, vAcc + 4 * ft, vP + 8, v(vWf + 8 * ft, 8), vIdx)
    mk = asm.mark()
    asm.gap(mk, 8)
    for i in range(4): asm("v_permlane32_swap_b32 %s, %s" % (v(vAcc + i), v(vAcc + 4 + i)))
    for i in range(4): asm("v_add_f32 %s, %s, %s" % (v(vU + i), v(vAcc + i), v(vAcc + 4 + i)))
    asm("ds_write_b128 %s, %s" % (v(vRw), v(vU, 4)))
    asm("s_waitcnt lgkmcnt(0)")
    pstamp(asm, 4)
    asm("s_barrier")
    pstamp(asm, 5)
    if PROF: asm("s_waitcnt lgkmcnt(0)")
    lw = asm.newlabel("vnotw0")
    asm("s_cmp_lg_u32 %s, 0" % s(S_W))
    asm("s_cbranch_scc1 %s" % lw)
    for wv in range(4):
        asm("ds_read_b128 %s, %s offset:%d" % (v(vAcc + 4 * wv, 4), v(vRw), wv * 1024))
    asm("s_waitcnt lgkmcnt(2)")
    asm("v_pk_add_f32 %s, %s, %s" % (v(vAcc, 2), v(vAcc, 2), v(vAcc + 4, 2)))
    asm("v_pk_add_f32 %s, %s, %s" % (v(vAcc + 2, 2), v(vAcc + 2, 2), v(vAcc + 6, 2)))
    asm("s_waitcnt lgkmcnt(0)")
    asm("v_pk_add_f32 %s, %s, %s" % (v(vAcc + 8, 2), v(vAcc + 8, 2), v(vAcc + 12, 2)))
    asm("v_pk_add_f32 %s, %s, %s" % (v(vAcc + 10, 2), v(vAcc + 10, 2), v(vAcc + 14, 2)))
    asm("v_pk_add_f32 %s, %s, %s" % (v(vAcc, 2), v(vAcc, 2), v(vAcc + 8, 2)))
    asm("v_pk_add_f32 %s, %s, %s" % (v(vAcc + 2, 2), v(vAcc + 2, 2), v(vAcc + 10, 2)))
    asm("v_cvt_pk_bf16_f32 %s, %s, %s" % (v(vU), v(vAcc), v(vAcc + 1)))
    asm("v_cvt_pk_bf16_f32 %s, %s, %s" % (v(vU + 1), v(vAcc + 2), v(vAcc + 3)))
    asm("s_add_u32 %s, %s, 7168" % (s(S_TMP), s(S_MB)))
    asm("buffer_store_dwordx2 %s, %s, %s, %s offen" % (v(vU, 2), v(vMo), SRD, s(S_TMP)))
    asm("buffer_store_dwordx2 %s, %s, %s, %s offen sc1" % (v(vU, 2), v(vMo), SRD, s(S_MX)))
    asm.label(lw)
    pstamp(asm, 6)
    pacc(asm, 6 if PROF == 1 else 7)
    asm("s_add_u32 %s, %s, 7168" % (s(S_MB), s(S_MB)))
    asm("s_add_u32 %s, %s, 7168" % (s(S_MX), s(S_MX)))
    asm("s_add_u32 %s, %s, 10240" % (s(S_PB), s(S_PB)))
    asm("s_add_u32 %s, %s, %d" % (s(S_ZX), s(S_ZX), 16 * 28 * 1024))
    asm("s_add_u32 %s, %s, %d" % (s(S_WX), s(S_WX), 14 * 8 * 1024))
    asm("s_add_u32 %s, %s, 1" % (s(S_STEP), s(S_STEP)))
    asm("s_branch L_V_loop")
    asm.label("L_V_end")
    if timing:
        stamp(asm, S_T1)
        emit_time_out(asm, 1)
        pout(asm, 28, 7)
    asm("s_branch L_done")
    return R

def emit_R_kernel(asm, name, timing=True):
    asm(".p2align 8")
    asm(".type %s,@function" % name)
    asm.label(name)
    asm("s_cmp_ge_u32 s2, 256")
    asm("s_cbranch_scc1 L_done")
    asm("s_load_dwordx2 %s, s[0:1], 128" % s(S_SRD, 2))
    asm("s_load_dwordx2 %s, s[0:1], 120" % s(S_DBG, 2))
    asm("s_load_dwordx2 %s, s[0:1], 8" % s(S_MEM0, 2))
    asm("s_getreg_b32 %s, hwreg(HW_REG_XCC_ID, 0, 4)" % s(S_TMP2))
    asm("v_lshrrev_b32 v1, 6, v0")
    asm("s_nop 0")
    asm("v_readfirstlane_b32 %s, v1" % s(S_W))
    asm("s_waitcnt lgkmcnt(0)")
    asm("s_and_b32 %s, %s, 0xffff" % (s(S_SRD + 1), s(S_SRD + 1)))
    asm("s_mov_b32 %s, 0x10000000" % s(S_SRD + 2))
    asm("s_mov_b32 %s, 0x20000" % s(S_SRD + 3))
    asm("v_lshlrev_b32 v2, 4, v0")
    for i in range(4): asm("v_mov_b32 v%d, 0" % (4 + i))
    for i in range(40):
        if i and i % 15 == 0:
            asm("v_add_u32 v2, %d, v2" % (15 * 4096))
        asm("ds_write_b128 v2, v[4:7] offset:%d" % ((i % 15) * 4096))
        if i % 8 == 7: asm("s_waitcnt lgkmcnt(0)")
    asm("s_waitcnt lgkmcnt(0)")
    asm("s_barrier")
    lt = asm.newlabel("notk")
    asm("s_cmp_lg_u32 %s, 0" % s(S_W))
    asm("s_cbranch_scc1 %s" % lt)
    asm("v_mov_b32 v2, %s" % s(S_TMP2))
    asm("v_lshlrev_b32 v2, 2, v2")
    asm("v_mov_b32 v3, 1")
    asm("s_mov_b64 exec, 1")
    asm("global_atomic_add v4, v2, v3, %s sc0" % s(S_DBG, 2))
    asm("s_waitcnt vmcnt(0)")
    asm("v_mov_b32 v2, %d" % (163840 - 16))
    asm("ds_write_b32 v2, v4")
    asm("s_waitcnt lgkmcnt(0)")
    asm("s_mov_b64 exec, -1")
    asm.label(lt)
    asm("s_barrier")
    asm("v_mov_b32 v2, %d" % (163840 - 16))
    asm("ds_read_b32 v4, v2")
    asm("s_waitcnt lgkmcnt(0)")
    asm("v_readfirstlane_b32 %s, v4" % s(S_ID))
    asm("s_nop 3")
    asm("s_cmp_lg_u32 %s, 0" % s(S_TMP2))
    asm("s_cbranch_scc1 L_done")
    asm("s_cmp_ge_u32 %s, 30" % s(S_ID))
    asm("s_cbranch_scc1 L_done")
    asm("s_cmp_ge_u32 %s, 16" % s(S_ID))
    asm("s_cbranch_scc1 L_V_role")
    RS = emit_S(asm, timing=timing)
    asm.label("L_V_role")
    asm("s_sub_u32 %s, %s, 16" % (s(S_ID), s(S_ID)))
    RV = emit_V(asm, timing=timing)
    asm.label("L_abort")
    asm("v_mov_b32 v2, 0xdead")
    asm("v_mov_b32 v3, 60")
    asm("global_store_dword v3, v2, %s" % s(S_DBG, 2))
    asm.label("L_done")
    asm("s_endpgm")

def kernel_desc(name, vgpr=512, accum=256, sgpr=96):
    return """.p2align 6
.amdhsa_kernel %s
  .amdhsa_next_free_vgpr %d
  .amdhsa_next_free_sgpr %d
  .amdhsa_accum_offset %d
  .amdhsa_group_segment_fixed_size 0
  .amdhsa_kernarg_size 136
  .amdhsa_user_sgpr_count 2
  .amdhsa_user_sgpr_kernarg_segment_ptr 1
  .amdhsa_system_sgpr_workgroup_id_x 1
.end_amdhsa_kernel
""" % (name, vgpr, sgpr, accum)

if __name__ == "__main__":
    import sys
    PROF = int(sys.argv[1]) if len(sys.argv) > 1 else 0
    NAME = "adaLN_cond__memory_aug_recurrent_mem_tr__moe_arch_mod__prompt_kernel"
    asm = Asm()
    emit_R_kernel(asm, NAME)
    out = "; @launch grid=(256,1,1) block=(256,1,1) lds=163840\n"
    out += '.amdgcn_target "amdgcn-amd-amdhsa--gfx950"\n.text\n.globl %s\n' % NAME
    out += asm.text()
    out += '.section .rodata,"a"\n' + kernel_desc(NAME)
    open("r_only.s", "w").write(out)
    print("written", len(out))
```

```python
from asmlib import *
import layout as L

S_SRD = 4; S_ID = 8; S_W = 9; S_STEP = 10; S_TO = 11; S_TMP = 12; S_MB = 13; S_PB = 14; S_HF = 15; S_TMP2 = 16
S_ZX = 17; S_WX = 18; S_MX = 19; S_DBG = 20; S_MEM0 = 22; S_SRD2 = 24; S_MEMM = 28; S_M8 = 30; S_N8 = 32
S_SC = 34; S_HX = 35; S_T0 = 36; S_T1 = 38; S_KQ = 40
S_PS = 48; S_PA = 64
TIMEOUT = 400000
SRD = s(S_SRD, 4)
PROF = 0

S_MA = 0
S_TT = 8192
TTS = 1088
TTW = 4 * TTS
S_SB = 8192 + 4 * TTW
S_HX0 = 32768
V_MA = 0
V_RB = 8192
V_UL = 16384

def smf(asm, d, av, b, idx):
    asm("v_smfmac_f32_16x16x64_bf16 %s, %s, %s, %s" % (v(d, 4), v(av, 4), b, v(idx)))
def mfma(asm, d, A, B):
    asm("v_mfma_f32_16x16x32_bf16 %s, %s, %s, %s" % (v(d, 4), A, B, v(d, 4)))

def pstamp(asm, i, mode=1):
    if PROF == mode: asm("s_memtime %s" % s(S_PS + 2 * i, 2))
    if PROF == 3 and mode == 1: asm("s_memrealtime %s" % s(S_PS + 2 * i, 2))
TRACE = 0x6000000
def ptrace(asm, rolebase):
    if PROF != 3: return
    asm("s_waitcnt lgkmcnt(0)")
    asm("s_add_u32 %s, %s, %d" % (s(S_TMP), s(S_ID), rolebase))
    asm("s_lshl_b32 %s, %s, 2" % (s(S_TMP), s(S_TMP)))
    asm("s_add_u32 %s, %s, %s" % (s(S_TMP), s(S_TMP), s(S_W)))
    asm("s_lshl_b32 %s, %s, 6" % (s(S_TMP), s(S_TMP)))
    asm("s_add_u32 %s, %s, %s" % (s(S_TMP), s(S_TMP), s(S_STEP)))
    asm("s_lshl_b32 %s, %s, 5" % (s(S_TMP), s(S_TMP)))
    asm("s_add_u32 %s, %s, %d" % (s(S_TMP), s(S_TMP), TRACE))
    asm("s_mov_b64 exec, 1")
    for i in range(7):
        asm("v_mov_b32 v%d, %s" % (TRV, s(S_PS + 2 * i)))
        asm("v_mov_b32 v%d, %d" % (TRV + 1, 4 * i))
        asm("buffer_store_dword v%d, v%d, %s, %s offen" % (TRV, TRV + 1, SRD, s(S_TMP)))
    asm("s_mov_b64 exec, -1")
TRV = 2
def pinit(asm):
    if PROF in (1, 2):
        for i in range(8): asm("s_mov_b32 %s, 0" % s(S_PA + i))
def pacc(asm, n):
    if PROF in (1, 2):
        asm("s_waitcnt lgkmcnt(0)")
        for i in range(n):
            asm("s_sub_u32 %s, %s, %s" % (s(S_TMP2), s(S_PS + 2 * (i + 1)), s(S_PS + 2 * i)))
            asm("s_add_u32 %s, %s, %s" % (s(S_PA + i), s(S_PA + i), s(S_TMP2)))
def pout(asm, base, n):
    if PROF in (1, 2):
        l = asm.newlabel("pskip")
        asm("s_or_b32 %s, %s, %s" % (s(S_TMP), s(S_ID), s(S_W)))
        asm("s_cmp_lg_u32 %s, 0" % s(S_TMP))
        asm("s_cbranch_scc1 %s" % l)
        for i in range(n):
            asm("v_mov_b32 v2, %s" % s(S_PA + i))
            asm("v_mov_b32 v3, %d" % (4 * (base + i)))
            asm("global_store_dword v3, v2, %s" % s(S_DBG, 2))
        asm.label(l)
def emit_time_out(asm, slot):
    l = asm.newlabel("tskip")
    asm("s_waitcnt lgkmcnt(0)")
    asm("s_sub_u32 %s, %s, %s" % (s(S_T1), s(S_T1), s(S_T0)))
    asm("s_or_b32 %s, %s, %s" % (s(S_TMP), s(S_ID), s(S_W)))
    asm("s_cmp_lg_u32 %s, 0" % s(S_TMP))
    asm("s_cbranch_scc1 %s" % l)
    asm("v_mov_b32 v2, %s" % s(S_T1))
    asm("v_mov_b32 v3, %d" % (64 + 4 * slot))
    asm("global_store_dword v3, v2, %s" % s(S_DBG, 2))
    asm.label(l)

def emit_idx(asm, vl, vidx, vt):
    asm("v_bfe_u32 %s, %s, 3, 1" % (v(vt), v(vl)))
    asm("v_mov_b32 %s, 0x44444444" % v(vidx))
    asm("s_mov_b32 %s, 0xaaaaaaaa" % s(S_TMP))
    asm("v_mul_lo_u32 %s, %s, %s" % (v(vt), v(vt), s(S_TMP)))
    asm("v_or_b32 %s, %s, %s" % (v(vidx), v(vidx), v(vt)))

def emit_kq(asm):
    for q in range(7):
        asm("s_lshl_b32 %s, %s, 1" % (s(S_TMP), s(S_W)))
        asm("s_add_u32 %s, %s, %d" % (s(S_TMP), s(S_TMP), q))
        asm("s_cmp_ge_u32 %s, 7" % s(S_TMP))
        asm("s_cselect_b32 %s, 7, 0" % s(S_TMP2))
        asm("s_sub_u32 %s, %s, %s" % (s(S_TMP), s(S_TMP), s(S_TMP2)))
        asm("s_lshl_b32 %s, %s, 10" % (s(S_KQ + q), s(S_TMP)))

class LdsTrack:
    def __init__(self, asm):
        self.asm = asm; self.n = 0; self.last = {}
    def issue(self, tag, ins):
        self.asm(ins); self.last[tag] = self.n; self.n += 1
    def wait(self, *tags):
        idx = max(self.last[t] for t in tags)
        cnt = self.n - idx - 1
        assert cnt <= 15
        self.asm("s_waitcnt lgkmcnt(%d)" % cnt)

def poll(asm, loads, regs, vT, nloads, DEPTH):
    lp = asm.newlabel("poll"); ld = asm.newlabel("polld")
    asm("s_mov_b32 %s, 0" % s(S_TO))
    for o in loads: asm(o)
    for o in loads: asm(o)
    asm.label(lp)
    asm("s_waitcnt vmcnt(%d)" % nloads)
    r = list(regs)
    a_, b_ = r[0::2], r[1::2]
    def chain(dst, lst):
        asm("v_max3_u32 %s, %s, %s, %s" % (v(dst), v(lst[0]), v(lst[1]), v(lst[2])))
        lst = lst[3:]
        while len(lst) >= 2:
            asm("v_max3_u32 %s, %s, %s, %s" % (v(dst), v(dst), v(lst[0]), v(lst[1]))); lst = lst[2:]
        if lst: asm("v_max_u32 %s, %s, %s" % (v(dst), v(dst), v(lst[0])))
    h = len(r) // 2
    chain(vT, r[:h]); chain(vT + 1, r[h:])
    asm("v_max_u32 %s, %s, %s" % (v(vT), v(vT), v(vT + 1)))
    asm("v_cmp_eq_u32 vcc, -1, %s" % v(vT))
    asm("s_cbranch_vccz %s" % ld)
    for o in loads: asm(o)
    asm("s_add_u32 %s, %s, 1" % (s(S_TO), s(S_TO)))
    asm("s_cmp_lt_u32 %s, %d" % (s(S_TO), TIMEOUT))
    asm("s_cbranch_scc1 %s" % lp)
    asm("s_branch L_abort")
    asm.label(ld)

def emit_S(asm, NSTEP=63, timing=False):
    R = Alloc(0, 120)
    vL16 = R("lane16"); vIdx = R("idx")
    vT = R("t", 2, 2)
    vA = R("A", 28, 4)
    vAcc = R("acc", 28, 4)
    vPk = R("pk", 4, 2)
    vTA = R("TA", 8, 4)
    vB = R("B", 24, 4)
    vS = R("S", 12, 4)
    vP0 = R("p0"); vP1 = R("p1"); vTw = R("tw"); vTr = R("tr"); vXa = R("xa"); vMa = R("ma")
    vSw = R("sw"); vSr = R("sr"); vPx = R("px"); vPm = R("pm"); vD = R("dma"); vQ = R("q")
    def G(t, q):
        f = t * 7 + q
        return a(8 * f, 8) if f < 32 else v(120 + 8 * (f - 32), 8)
    vL = vQ
    asm.c("===== S role =====")
    asm("v_and_b32 %s, 63, v0" % v(vL))
    asm("v_lshlrev_b32 %s, 4, %s" % (v(vL16), v(vL)))
    emit_idx(asm, vL, vIdx, vT)
    emit_kq(asm)
    asm("v_add_u32 %s, %s, %s" % (v(vP0), s(S_KQ), v(vL16)))
    asm("v_add_u32 %s, %s, %s" % (v(vP1), s(S_KQ + 1), v(vL16)))
    asm("s_mul_i32 %s, %s, %d" % (s(S_TMP), s(S_W), TTW))
    asm("s_add_u32 %s, %s, %d" % (s(S_TMP), s(S_TMP), S_TT))
    asm("v_lshrrev_b32 %s, 4, %s" % (v(vT), v(vL)))
    asm("v_mul_u32_u24 %s, %d, %s" % (v(vT), TTS, v(vT)))
    asm("v_and_b32 %s, 15, %s" % (v(vT + 1), v(vL)))
    asm("v_lshl_add_u32 %s, %s, 3, %s" % (v(vTw), v(vT + 1), v(vT)))
    asm("v_add_u32 %s, %s, %s" % (v(vTw), s(S_TMP), v(vTw)))
    asm("v_and_b32 %s, 3, %s" % (v(vT), v(vL)))
    asm("v_mul_u32_u24 %s, %d, %s" % (v(vTr), TTS, v(vT)))
    asm("v_bfe_u32 %s, %s, 5, 1" % (v(vT), v(vL)))
    asm("v_lshl_add_u32 %s, %s, 7, %s" % (v(vTr), v(vT), v(vTr)))
    asm("v_bfe_u32 %s, %s, 4, 1" % (v(vT), v(vL)))
    asm("v_lshl_add_u32 %s, %s, 5, %s" % (v(vTr), v(vT), v(vTr)))
    asm("v_bfe_u32 %s, %s, 2, 2" % (v(vT), v(vL)))
    asm("v_lshl_add_u32 %s, %s, 3, %s" % (v(vTr), v(vT), v(vTr)))
    asm("v_add_u32 %s, %s, %s" % (v(vTr), s(S_TMP), v(vTr)))
    asm("v_lshrrev_b32 %s, 4, %s" % (v(vT), v(vL)))
    asm("s_mul_i32 %s, %s, 14" % (s(S_TMP), s(S_W)))
    asm("v_add_u32 %s, %s, %s" % (v(vT), s(S_TMP), v(vT)))
    asm("v_lshlrev_b32 %s, 9, %s" % (v(vXa), v(vT)))
    for bit, sh in [(3, 8), (1, 7), (2, 6), (0, 5)]:
        asm("v_bfe_u32 %s, %s, %d, 1" % (v(vT + 1), v(vL), bit))
        asm("v_lshl_add_u32 %s, %s, %d, %s" % (v(vXa), v(vT + 1), sh, v(vXa)))
    asm("v_add_u32 %s, %d, %s" % (v(vXa), S_HX0, v(vXa)))
    asm("v_lshlrev_b32 %s, 7, %s" % (v(vMa), v(vT)))
    asm("v_and_b32 %s, 7, %s" % (v(vT + 1), v(vL)))
    asm("v_lshl_add_u32 %s, %s, 4, %s" % (v(vMa), v(vT + 1), v(vMa)))
    asm("v_bfe_u32 %s, %s, 4, 1" % (v(vT), v(vL)))
    asm("v_lshlrev_b32 %s, 2, %s" % (v(vT), v(vT)))
    asm("v_lshrrev_b32 %s, 5, %s" % (v(vT + 1), v(vL)))
    asm("v_add_u32 %s, %s, %s" % (v(vT), v(vT), v(vT + 1)))
    asm("v_mul_u32_u24 %s, 768, %s" % (v(vSw), v(vT)))
    asm("v_and_b32 %s, 15, %s" % (v(vT + 1), v(vL)))
    asm("v_lshl_add_u32 %s, %s, 4, %s" % (v(vSw), v(vT + 1), v(vSw)))
    asm("s_lshl_b32 %s, %s, 2" % (s(S_TMP), s(S_W)))
    asm("s_add_u32 %s, %s, %d" % (s(S_TMP), s(S_TMP), S_SB))
    asm("v_add_u32 %s, %s, %s" % (v(vSw), s(S_TMP), v(vSw)))
    asm("s_and_b32 %s, %s, 1" % (s(S_TMP), s(S_W)))
    asm("s_lshl_b32 %s, %s, 2" % (s(S_TMP), s(S_TMP)))
    asm("v_lshrrev_b32 %s, 4, %s" % (v(vT), v(vL)))
    asm("v_add_u32 %s, %s, %s" % (v(vT), s(S_TMP), v(vT)))
    asm("v_mul_u32_u24 %s, 768, %s" % (v(vSr), v(vT)))
    asm("v_lshl_add_u32 %s, %s, 4, %s" % (v(vSr), v(vT + 1), v(vSr)))
    asm("v_add_u32 %s, %d, %s" % (v(vSr), S_SB, v(vSr)))
    asm("s_lshl_b32 %s, %s, 9" % (s(S_TMP), s(S_ID)))
    asm("v_lshlrev_b32 %s, 6, %s" % (v(vPx), v(vT)))
    asm("v_and_b32 %s, 15, %s" % (v(vPk), v(vL)))
    asm("v_lshl_add_u32 %s, %s, 2, %s" % (v(vPx), v(vPk), v(vPx)))
    asm("v_add_u32 %s, %s, %s" % (v(vPx), s(S_TMP), v(vPx)))
    asm("v_lshlrev_b32 %s, 5, %s" % (v(vPm), v(vT)))
    asm("v_bfe_u32 %s, %s, 2, 1" % (v(vPk), v(vL)))
    asm("v_lshl_add_u32 %s, %s, 4, %s" % (v(vPm), v(vPk), v(vPm)))
    asm("v_bfe_u32 %s, %s, 1, 1" % (v(vPk), v(vL)))
    asm("v_lshl_add_u32 %s, %s, 2, %s" % (v(vPm), v(vPk), v(vPm)))
    asm("s_lshr_b32 %s, %s, 1" % (s(S_TMP), s(S_ID)))
    asm("s_lshl_b32 %s, %s, 8" % (s(S_TMP), s(S_TMP)))
    asm("s_and_b32 %s, %s, 1" % (s(S_TMP2), s(S_ID)))
    asm("s_lshl_b32 %s, %s, 3" % (s(S_TMP2), s(S_TMP2)))
    asm("s_add_u32 %s, %s, %s" % (s(S_TMP), s(S_TMP), s(S_TMP2)))
    asm("s_add_u32 %s, %s, 8192" % (s(S_TMP), s(S_TMP)))
    asm("v_add_u32 %s, %s, %s" % (v(vPm), s(S_TMP), v(vPm)))
    asm("s_mul_i32 %s, %s, 7168" % (s(S_TMP), s(S_W)))
    asm("v_add_u32 %s, %s, %s" % (v(vD), s(S_TMP), v(vL16)))
    asm("s_add_u32 %s, %s, %d" % (s(S_HX), s(S_TMP), S_HX0))
    asm("s_mov_b32 %s, 0x00550055" % s(S_MEMM)); asm("s_mov_b32 %s, 0x00550055" % s(S_MEMM + 1))
    asm("s_mov_b32 %s, 0x00ff00ff" % s(S_M8)); asm("s_mov_b32 %s, 0x00ff00ff" % s(S_M8 + 1))
    asm("s_mov_b32 %s, 0x3db8aa3b" % s(S_SC))
    asm("s_lshl_b32 %s, %s, 2" % (s(S_TMP), s(S_ID)))
    asm("s_add_u32 %s, %s, %s" % (s(S_TMP), s(S_TMP), s(S_W)))
    asm("s_mul_i32 %s, %s, %d" % (s(S_TMP), s(S_TMP), 49 * 2048))
    asm("s_add_u32 %s, %s, %d" % (s(S_TMP), s(S_TMP), L.GF))
    cnt = 0
    for t in range(7):
        for q in range(7):
            f = t * 7 + q
            asm("s_lshl_b32 %s, %s, 1" % (s(S_TMP2), s(S_KQ + q)))
            asm("s_add_u32 %s, %s, %s" % (s(S_TMP2), s(S_TMP2), s(S_TMP)))
            for u in range(2):
                dst = a(8 * f + 4 * u, 4) if f < 32 else v(120 + 8 * (f - 32) + 4 * u, 4)
                asm("buffer_load_dwordx4 %s, %s, %s, %s offen offset:%d" % (dst, v(vL16), SRD, s(S_TMP2), u * 1024))
            cnt += 1
            if cnt % 16 == 0: asm("s_waitcnt vmcnt(16)")
        asm("s_add_u32 %s, %s, %d" % (s(S_TMP), s(S_TMP), 7 * 2048))
    def dma_issue():
        asm("s_mov_b32 m0, %s" % s(S_HX))
        asm("s_add_u32 %s, %s, 4096" % (s(S_TMP), s(S_HF)))
        for p in range(4):
            asm("buffer_load_dwordx4 %s, %s, %s offen offset:%d lds" % (v(vD), SRD, s(S_HF), p * 1024))
        asm("s_add_u32 m0, %s, 4096" % s(S_HX))
        asm("s_nop 0")
        for p in range(3):
            asm("buffer_load_dwordx4 %s, %s, %s offen offset:%d lds" % (v(vD), SRD, s(S_TMP), p * 1024))
        asm("s_add_u32 %s, %s, 28672" % (s(S_HF), s(S_HF)))
    asm("s_mov_b32 %s, %d" % (s(S_HF), L.HF))
    dma_issue()
    asm("s_mov_b32 %s, %d" % (s(S_MB), L.MB))
    asm("s_mov_b32 %s, %d" % (s(S_PB), L.PB))
    asm("s_mov_b32 %s, 0" % s(S_STEP))
    asm("s_waitcnt vmcnt(0)")
    if timing: asm("s_memtime %s" % s(S_T0, 2))
    pinit(asm)
    asm.label("L_S_loop")
    pstamp(asm, 0)
    acc = lambda t: vAcc + 4 * t
    for i in range(0, 28, 2): asm("v_mov_b64 %s, 0" % v(vAcc + i, 2))
    for i in range(0, 12, 2): asm("v_mov_b64 %s, 0" % v(vS + i, 2))
    loads = ["buffer_load_dwordx4 %s, %s, %s, %s offen sc1" % (v(vA, 4), v(vP0), SRD, s(S_MB)),
             "buffer_load_dwordx4 %s, %s, %s, %s offen sc1" % (v(vA + 4, 4), v(vP1), SRD, s(S_MB))]
    poll(asm, loads, range(vA, vA + 8), vT, 2, DEPTH_M)
    pstamp(asm, 1)
    asm("ds_write_b128 %s, %s offset:%d" % (v(vP0), v(vA, 4), S_MA))
    asm("ds_write_b128 %s, %s offset:%d" % (v(vP1), v(vA + 4, 4), S_MA))
    marks = {}
    for t in range(7):
        smf(asm, acc(t), vA, G(t, 0), vIdx)
        if t == 3:
            asm("s_waitcnt lgkmcnt(0)")
            asm("s_barrier")
        if t >= 3 and t < 7:
            pass
    lds = LdsTrack(asm)
    for q in range(2, 7):
        ar = vQ if q % 2 == 0 else vT
        asm("v_add_u32 %s, %s, %s" % (v(ar), s(S_KQ + q), v(vL16)))
        lds.issue("A%d" % q, "ds_read_b128 %s, %s offset:%d" % (v(vA + 4 * q, 4), v(ar), S_MA))
    for t in range(7):
        smf(asm, acc(t), vA + 4, G(t, 1), vIdx)
    pstamp(asm, 2)
    def breads(q):
        b = vB + 12 * (q % 2)
        return [("B%d" % q, "ds_read_b128 %s, %s offset:%d" % (v(b, 4), v(vXa), q * 2048)),
                ("B%d" % q, "ds_read_b128 %s, %s offset:%d" % (v(b + 4, 4), v(vXa), q * 2048 + 16)),
                ("B%d" % q, "ds_read_b128 %s, %s offset:%d" % (v(b + 8, 4), v(vMa), S_MA + q * 512))]
    def tpack(t):
        pk = vPk + 2 * (t % 2)
        return [(None, "v_cvt_pk_bf16_f32 %s, %s, %s" % (v(pk), v(acc(t)), v(acc(t) + 1))),
                (None, "v_cvt_pk_bf16_f32 %s, %s, %s" % (v(pk + 1), v(acc(t) + 2), v(acc(t) + 3))),
                ("W%d" % t, "ds_write_b64 %s, %s offset:%d" % (v(vTw), v(pk, 2), t * 128))]
    def treads(q):
        ta = vTA + 4 * (q % 2)
        return [("T%d" % q, "ds_read_b64_tr_b16 %s, %s offset:%d" % (v(ta + 2 * rd, 2), v(vTr), q * 256 + rd * 64)) for rd in range(2)]
    def smm(q):
        ta = vTA + 4 * (q % 2); b = vB + 12 * (q % 2)
        lds.wait("B%d" % q, "T%d" % q)
        for tile in range(3):
            mfma(asm, vS + 4 * tile, v(ta, 4), v(b + 4 * tile, 4))
    def put(item):
        tag, ins = item
        if tag is None: asm(ins)
        else: lds.issue(tag, ins)
    aux = {m: [] for m in range(0, 40)}
    b0 = breads(0); aux[1] += b0[:1]; aux[2] += b0[1:2]; aux[3] += b0[2:]
    for t in range(6):
        p = tpack(t)
        aux[5 * (t + 1) + 2] += p[:2]
        aux[5 * (t + 1) + 3] += p[2:]
    aux[14] += treads(0); aux[24] += treads(1); aux[34] += treads(2)
    b1 = breads(1); aux[15] += b1[:1]; aux[16] += b1[1:2]; aux[19] += b1[2:]
    b2 = breads(2); aux[20] += b2[:1]; aux[21] += b2[1:2]; aux[25] += b2[2:]
    b3 = breads(3); aux[30] += b3[:1]; aux[31] += b3[1:2]; aux[29] += b3[2:]
    post = {18: 0, 28: 1}
    m = 0
    for t in range(7):
        for sl in range(2, 7):
            if t == 0: lds.wait("A%d" % sl)
            smf(asm, acc(t), vA + 4 * sl, G(t, sl), vIdx)
            marks[m] = asm.mark()
            first = True
            for it in aux[m]:
                if it[1].startswith("v_cvt_pk") and first:
                    asm.gap(marks[(m // 5) * 5 - 1], 8)
                    first = False
                put(it)
            if m in post:
                smm(post[m])
            m += 1
    pstamp(asm, 3)
    smm(2)
    asm.gap(marks[34], 8)
    for it in tpack(6): put(it)
    for it in treads(3): put(it)
    smm(3)
    mk = asm.mark()
    asm.gap(mk, 8)
    for tile in range(3):
        b = vS + 4 * tile
        asm("v_permlane32_swap_b32 %s, %s" % (v(b), v(b + 1)))
        asm("v_permlane32_swap_b32 %s, %s" % (v(b + 2), v(b + 3)))
    for tile in range(3):
        b = vS + 4 * tile
        asm("v_add_f32 %s, %s, %s" % (v(b), v(b), v(b + 1)))
        asm("v_add_f32 %s, %s, %s" % (v(b + 2), v(b + 2), v(b + 3)))
        asm("ds_write2st64_b32 %s, %s, %s offset0:%d offset1:%d" % (v(vSw), v(b), v(b + 2), tile, tile + 6))
    asm("s_waitcnt lgkmcnt(0)")
    pstamp(asm, 4)
    asm("s_barrier")
    pstamp(asm, 5)
    if PROF: asm("s_waitcnt lgkmcnt(0)")
    lsk = asm.newlabel("nosm")
    asm("s_cmp_ge_u32 %s, 2" % s(S_W))
    asm("s_cbranch_scc1 %s" % lsk)
    e_ = vAcc; o_ = vAcc + 4; c_ = vAcc + 8; MXr = vAcc + 12; TT = vAcc + 13; SU = vAcc + 14; T2 = vAcc + 15
    asm("ds_read_b128 %s, %s" % (v(e_, 4), v(vSr)))
    asm("ds_read_b128 %s, %s offset:256" % (v(o_, 4), v(vSr)))
    asm("ds_read_b128 %s, %s offset:512" % (v(c_, 4), v(vSr)))
    asm("v_mov_b32 %s, 0xff800000" % v(TT))
    for i, r_ in enumerate([e_, o_, c_]):
        asm("s_waitcnt lgkmcnt(%d)" % (2 - i))
        asm("v_pk_add_f32 %s, %s, %s" % (v(r_, 2), v(r_, 2), v(r_ + 2, 2)))
    for r_ in [e_, o_, c_]:
        asm("v_add_f32 %s, %s, %s" % (v(r_), v(r_), v(r_ + 1)))
    asm("v_cndmask_b32 %s, %s, %s, %s" % (v(c_), v(TT), v(c_), s(S_M8, 2)))
    asm("v_max3_f32 %s, %s, %s, %s" % (v(MXr), v(e_), v(o_), v(c_)))
    def reduce(op, r):
        for dpp in ["quad_perm:[1,0,3,2]", "quad_perm:[2,3,0,1]", "row_half_mirror", "row_mirror"]:
            asm("s_nop 1")
            asm("%s_dpp %s, %s, %s %s row_mask:0xf bank_mask:0xf" % (op, v(r), v(r), v(r), dpp))
    reduce("v_max_f32", MXr)
    asm("v_mul_f32 %s, %s, %s" % (v(MXr), s(S_SC), v(MXr)))
    for r_ in [e_, o_, c_]:
        asm("v_fma_f32 %s, %s, %s, -%s" % (v(r_), v(r_), s(S_SC), v(MXr)))
    for r_ in [e_, o_, c_]:
        asm("v_exp_f32 %s, %s" % (v(r_), v(r_)))
    asm("v_add_f32 %s, %s, %s" % (v(SU), v(e_), v(o_)))
    asm("v_add_f32 %s, %s, %s" % (v(SU), v(SU), v(c_)))
    reduce("v_add_f32", SU)
    asm("v_rcp_f32 %s, %s" % (v(SU), v(SU)))
    asm("s_nop 0")
    asm("v_mul_f32 %s, %s, %s" % (v(c_), v(c_), v(SU)))
    asm("v_mul_f32 %s, %s, %s" % (v(e_), v(e_), v(SU)))
    asm("v_mul_f32 %s, %s, %s" % (v(o_), v(o_), v(SU)))
    asm("v_mov_b32_dpp %s, %s quad_perm:[1,0,3,2] row_mask:0xf bank_mask:0xf" % (v(T2), v(c_)))
    asm("v_cvt_pk_bf16_f32 %s, %s, %s" % (v(e_), v(e_), v(o_)))
    asm("buffer_store_dword %s, %s, %s, %s offen" % (v(e_), v(vPx), SRD, s(S_PB)))
    asm("v_cvt_pk_bf16_f32 %s, %s, %s" % (v(c_), v(c_), v(T2)))
    asm("s_mov_b64 exec, %s" % s(S_MEMM, 2))
    asm("buffer_store_dword %s, %s, %s, %s offen" % (v(c_), v(vPm), SRD, s(S_PB)))
    asm("s_mov_b64 exec, -1")
    asm.label(lsk)
    asm("s_barrier")
    pstamp(asm, 6)
    if 'nodma' not in EXP: dma_issue()
    pacc(asm, 6)
    global TRV
    TRV = vT
    ptrace(asm, 0)
    asm("s_add_u32 %s, %s, 7168" % (s(S_MB), s(S_MB)))
    asm("s_add_u32 %s, %s, 10240" % (s(S_PB), s(S_PB)))
    asm("s_add_u32 %s, %s, 1" % (s(S_STEP), s(S_STEP)))
    asm("s_cmp_lt_u32 %s, %d" % (s(S_STEP), NSTEP))
    asm("s_cbranch_scc1 L_S_loop")
    if timing:
        asm("s_memtime %s" % s(S_T1, 2))
        emit_time_out(asm, 0)
        pout(asm, 20, 7)
    asm("s_branch L_done")
    return R

def emit_V(asm, NSTEP=63, timing=False):
    R = Alloc(0, 176)
    vL = R("lane"); vIdx = R("idx"); vL16 = R("l16")
    vT = R("t", 2, 2)
    vA = R("A", 28, 4)
    vAcc = R("acc", 16, 4)
    vU = R("u", 4, 4)
    vWf = R("wf", 8, 4)
    vZx = R("zx", 32, 4)
    vUb = R("ub", 32, 4)
    vP = R("p", 12, 4)
    vMs = R("ms", 2, 2)
    vP0 = R("p0"); vP1 = R("p1"); vUa = R("ua"); vZo = R("zo"); vPo = R("po"); vPo2 = R("po2"); vRw = R("rw"); vRr = R("rr"); vMo = R("mo"); vWo = R("wo"); vTo = R("to")
    LDS_TILES = [3, 7]
    reg_tiles = [t for t in range(8) if t not in LDS_TILES]
    def U(t, k):
        f = reg_tiles.index(t) * 7 + k
        return a(8 * f, 8) if f < 32 else v(176 + 8 * (f - 32), 8)
    asm.c("===== V role =====")
    asm("v_and_b32 %s, 63, v0" % v(vL))
    asm("v_lshlrev_b32 %s, 4, %s" % (v(vL16), v(vL)))
    emit_idx(asm, vL, vIdx, vT)
    emit_kq(asm)
    asm("v_add_u32 %s, %s, %s" % (v(vP0), s(S_KQ), v(vL16)))
    asm("v_add_u32 %s, %s, %s" % (v(vP1), s(S_KQ + 1), v(vL16)))
    asm("s_mul_i32 %s, %s, %d" % (s(S_TMP), s(S_W), 14 * 2048))
    asm("s_add_u32 %s, %s, %d" % (s(S_TMP), s(S_TMP), V_UL))
    asm("v_add_u32 %s, %s, %s" % (v(vUa), s(S_TMP), v(vL16)))
    asm("s_mul_i32 %s, %s, %d" % (s(S_TMP), s(S_W), 4 * 28 * 1024))
    asm("s_lshl_b32 %s, %s, 11" % (s(S_TMP2), s(S_ID)))
    asm("s_add_u32 %s, %s, %s" % (s(S_TMP), s(S_TMP), s(S_TMP2)))
    asm("v_add_u32 %s, %s, %s" % (v(vZo), s(S_TMP), v(vL16)))
    asm("s_lshl_b32 %s, %s, 11" % (s(S_TMP), s(S_W)))
    asm("v_bfe_u32 %s, %s, 3, 1" % (v(vT), v(vL)))
    asm("v_lshlrev_b32 %s, 9, %s" % (v(vPo), v(vT)))
    asm("v_and_b32 %s, 7, %s" % (v(vT + 1), v(vL)))
    asm("v_lshl_add_u32 %s, %s, 6, %s" % (v(vPo), v(vT + 1), v(vPo)))
    asm("v_lshrrev_b32 %s, 4, %s" % (v(vT), v(vL)))
    asm("v_lshl_add_u32 %s, %s, 4, %s" % (v(vPo), v(vT), v(vPo)))
    asm("v_add_u32 %s, %s, %s" % (v(vPo), s(S_TMP), v(vPo)))
    asm("v_lshrrev_b32 %s, 5, %s" % (v(vT), v(vL)))
    asm("v_lshlrev_b32 %s, 8, %s" % (v(vPo2), v(vT)))
    asm("v_lshl_add_u32 %s, %s, 5, %s" % (v(vPo2), v(vT + 1), v(vPo2)))
    asm("v_bfe_u32 %s, %s, 4, 1" % (v(vT), v(vL)))
    asm("v_lshl_add_u32 %s, %s, 4, %s" % (v(vPo2), v(vT), v(vPo2)))
    asm("s_lshl_b32 %s, %s, 9" % (s(S_TMP), s(S_W)))
    asm("s_add_u32 %s, %s, 8192" % (s(S_TMP), s(S_TMP)))
    asm("v_add_u32 %s, %s, %s" % (v(vPo2), s(S_TMP), v(vPo2)))
    asm("v_lshlrev_b32 %s, 7, %s" % (v(vTo), v(vL)))
    asm("s_lshl_b32 %s, %s, 11" % (s(S_TMP), s(S_W)))
    asm("v_add_u32 %s, %s, %s" % (v(vT), s(S_TMP), v(vTo)))
    asm("s_lshl_b32 %s, %s, 9" % (s(S_TMP), s(S_W)))
    asm("s_add_u32 %s, %s, %d" % (s(S_TMP), s(S_TMP), 8192 - 16 * 128))
    asm("v_add_u32 %s, %s, %s" % (v(vTo), s(S_TMP), v(vTo)))
    asm("v_cmp_gt_u32 vcc, 16, %s" % v(vL))
    asm("s_nop 1")
    asm("v_cndmask_b32 %s, %s, %s, vcc" % (v(vTo), v(vTo), v(vT)))
    asm("s_lshl_b32 %s, %s, 11" % (s(S_TMP), s(S_W)))
    asm("s_add_u32 %s, %s, %d" % (s(S_TMP), s(S_TMP), V_RB))
    asm("v_add_u32 %s, %s, %s" % (v(vRw), s(S_TMP), v(vL16)))
    asm("v_and_b32 %s, 1, %s" % (v(vT), v(vL)))
    asm("v_lshlrev_b32 %s, 1, %s" % (v(vT), v(vT)))
    asm("v_bfe_u32 %s, %s, 4, 1" % (v(vT + 1), v(vL)))
    asm("v_add_u32 %s, %s, %s" % (v(vT), v(vT), v(vT + 1)))
    asm("v_bfe_u32 %s, %s, 1, 3" % (v(vT + 1), v(vL)))
    asm("v_lshrrev_b32 %s, 5, %s" % (v(vU), v(vL)))
    asm("v_lshlrev_b32 %s, 8, %s" % (v(vRr), v(vT)))
    asm("v_lshl_add_u32 %s, %s, 4, %s" % (v(vRr), v(vT + 1), v(vRr)))
    asm("v_lshl_add_u32 %s, %s, 10, %s" % (v(vRr), v(vU), v(vRr)))
    asm("v_add_u32 %s, %d, %s" % (v(vRr), V_RB, v(vRr)))
    asm("s_lshl_b32 %s, %s, 9" % (s(S_TMP), s(S_ID)))
    asm("v_lshlrev_b32 %s, 3, %s" % (v(vMo), v(vL)))
    asm("v_add_u32 %s, %s, %s" % (v(vMo), s(S_TMP), v(vMo)))
    lskip = asm.newlabel("m0skip")
    asm("s_cmp_lg_u32 %s, 0" % s(S_W))
    asm("s_cbranch_scc1 %s" % lskip)
    asm("v_mul_u32_u24 %s, 896, %s" % (v(vU + 2), v(vT + 1)))
    asm("v_lshl_add_u32 %s, %s, 5, %s" % (v(vU + 2), v(vU), v(vU + 2)))
    asm("v_lshl_add_u32 %s, %s, 3, %s" % (v(vU + 2), v(vT), v(vU + 2)))
    asm("s_lshl_b32 %s, %s, 6" % (s(S_TMP), s(S_ID)))
    asm("v_add_u32 %s, %s, %s" % (v(vU + 2), s(S_TMP), v(vU + 2)))
    asm("s_mov_b32 %s, %s" % (s(S_SRD2), s(S_MEM0)))
    asm("s_and_b32 %s, %s, 0xffff" % (s(S_SRD2 + 1), s(S_MEM0 + 1)))
    asm("s_mov_b32 %s, 7168" % s(S_SRD2 + 2))
    asm("s_mov_b32 %s, 0x20000" % s(S_SRD2 + 3))
    asm("buffer_load_dwordx2 %s, %s, %s, 0 offen" % (v(vAcc, 2), v(vU + 2), s(S_SRD2, 4)))
    asm("s_waitcnt vmcnt(0)")
    asm("s_mov_b32 %s, %d" % (s(S_TMP), L.MB))
    asm("buffer_store_dwordx2 %s, %s, %s, %s offen" % (v(vAcc, 2), v(vMo), SRD, s(S_TMP)))
    asm("s_mov_b32 %s, %d" % (s(S_TMP), L.MX))
    asm("buffer_store_dwordx2 %s, %s, %s, %s offen sc1" % (v(vAcc, 2), v(vMo), SRD, s(S_TMP)))
    asm.label(lskip)
    asm("s_lshl_b32 %s, %s, 3" % (s(S_TMP), s(S_ID)))
    asm("s_lshl_b32 %s, %s, 1" % (s(S_TMP2), s(S_W)))
    asm("s_add_u32 %s, %s, %s" % (s(S_TMP), s(S_TMP), s(S_TMP2)))
    asm("s_lshl_b32 %s, %s, 10" % (s(S_TMP), s(S_TMP)))
    asm("v_add_u32 %s, %s, %s" % (v(vWo), s(S_TMP), v(vL16)))
    asm("s_mov_b32 %s, 0x00ff00ff" % s(S_N8)); asm("s_mov_b32 %s, 0x00ff00ff" % s(S_N8 + 1))
    asm("s_lshl_b32 %s, %s, 2" % (s(S_TMP), s(S_ID)))
    asm("s_add_u32 %s, %s, %s" % (s(S_TMP), s(S_TMP), s(S_W)))
    asm("s_mul_i32 %s, %s, %d" % (s(S_TMP), s(S_TMP), 56 * 2048))
    asm("s_add_u32 %s, %s, %d" % (s(S_TMP), s(S_TMP), L.UF))
    asm("s_mul_i32 %s, %s, %d" % (s(S_TMP2), s(S_W), 14 * 2048))
    asm("s_add_u32 %s, %s, %d" % (s(S_TMP2), s(S_TMP2), V_UL))
    cnt = 0
    for t in range(8):
        for k in range(7):
            if t in LDS_TILES:
                li = LDS_TILES.index(t) * 7 + k
                asm("s_add_u32 m0, %s, %d" % (s(S_TMP2), li * 2048))
                asm("s_nop 0")
                for u in range(2):
                    asm("buffer_load_dwordx4 %s, %s, %s offen offset:%d lds" % (v(vL16), SRD, s(S_TMP), u * 1024))
            else:
                f = reg_tiles.index(t) * 7 + k
                for u in range(2):
                    dst = a(8 * f + 4 * u, 4) if f < 32 else v(176 + 8 * (f - 32) + 4 * u, 4)
                    asm("buffer_load_dwordx4 %s, %s, %s, %s offen offset:%d" % (dst, v(vL16), SRD, s(S_TMP), u * 1024))
            asm("s_add_u32 %s, %s, 2048" % (s(S_TMP), s(S_TMP)))
            cnt += 1
            if cnt % 16 == 0: asm("s_waitcnt vmcnt(16)")
    asm("s_mov_b32 %s, %d" % (s(S_MB), L.MB))
    asm("s_mov_b32 %s, %d" % (s(S_PB), L.PB))
    asm("s_mov_b32 %s, %d" % (s(S_ZX), L.ZX))
    asm("s_mov_b32 %s, %d" % (s(S_WX), L.WX))
    asm("s_mov_b32 %s, %d" % (s(S_MX), L.MX))
    asm("s_mov_b32 %s, 0" % s(S_STEP))
    asm("s_waitcnt vmcnt(0)")
    asm("s_barrier")
    if timing: asm("s_memtime %s" % s(S_T0, 2))
    pinit(asm)
    asm.label("L_V_loop")
    pstamp(asm, 0)
    loads = ["buffer_load_dwordx4 %s, %s, %s, %s offen sc1" % (v(vUb, 4), v(vP0), SRD, s(S_MB)),
             "buffer_load_dwordx4 %s, %s, %s, %s offen sc1" % (v(vUb + 4, 4), v(vP1), SRD, s(S_MB))]
    poll(asm, loads, range(vUb, vUb + 8), vT, 2, 1)
    pstamp(asm, 1)
    asm("ds_write_b128 %s, %s offset:%d" % (v(vP0), v(vUb, 4), V_MA))
    asm("ds_write_b128 %s, %s offset:%d" % (v(vP1), v(vUb + 4, 4), V_MA))
    for i in range(0, 16, 2): asm("v_mov_b64 %s, 0" % v(vAcc + i, 2))
    asm("s_waitcnt vmcnt(0) lgkmcnt(0)")
    asm("s_barrier")
    for k in range(7):
        asm("ds_read_b128 %s, %s offset:%d" % (v(vA + 4 * k, 4), v(vL16), V_MA + k * 1024))
    lnp = asm.newlabel("nopub")
    asm("s_cmp_eq_u32 %s, 0" % s(S_STEP))
    asm("s_cbranch_scc1 %s" % lnp)
    asm("s_sub_u32 %s, %s, %d" % (s(S_TMP), s(S_WX), 14 * 8 * 1024))
    for ft in range(2):
        asm("buffer_store_dwordx4 %s, %s, %s, %s offen offset:%d sc1" % (v(vWf + 4 * ft, 4), v(vWo), SRD, s(S_TMP), ft * 1024))
    asm("s_cmp_lg_u32 %s, 0" % s(S_W))
    asm("s_cbranch_scc1 %s" % lnp)
    asm("buffer_store_dwordx2 %s, %s, %s, %s offen sc1" % (v(vMs, 2), v(vMo), SRD, s(S_MX)))
    asm.label(lnp)
    if 'notouch' not in EXP:
        asm("s_mov_b64 exec, 0xfffff")
        asm("buffer_load_dword %s, %s, %s, %s offen sc1" % (v(vP), v(vTo), SRD, s(S_PB)))
        asm("s_mov_b64 exec, -1")
    aux = {m: [] for m in range(0, 64)}
    acc = lambda t: vAcc + 4 * (t % 4)
    def zero(ac): return ["v_mov_b64 %s, 0" % v(ac, 2), "v_mov_b64 %s, 0" % v(ac + 2, 2)]
    def place(ops, start, per=1):
        p = start
        for o in ops:
            while len(aux[p]) >= per: p += 1
            aux[p].append(o)
        return p
    def pair_ops(ta, tb, dst):
        A_, B_ = acc(ta), acc(tb)
        ops = []
        for i in range(4): ops.append("v_permlane32_swap_b32 %s, %s" % (v(A_ + i), v(B_ + i)))
        for i in range(4): ops.append("v_add_f32 %s, %s, %s" % (v(vU + i), v(A_ + i), v(B_ + i)))
        ops.append("v_cvt_pk_bf16_f32 %s, %s, %s" % (v(dst), v(vU), v(vU + 1)))
        ops.append("v_cvt_pk_bf16_f32 %s, %s, %s" % (v(dst + 1), v(vU + 2), v(vU + 3)))
        return ops
    e = place(pair_ops(0, 1, vWf), 17, 2); place(zero(acc(4)) + zero(acc(5)), e, 2)
    e = place(pair_ops(2, 3, vWf + 2), 31, 2); place(zero(acc(6)) + zero(acc(7)), e, 2)
    e = place(pair_ops(4, 5, vWf + 4), 45, 2)
    def ubuf(k): return vUb + 8 * (k % 4)
    def uread(t, k):
        li = LDS_TILES.index(t) * 7 + k
        return ["ds_read_b128 %s, %s offset:%d" % (v(ubuf(k) + 4 * u, 4), v(vUa), li * 2048 + u * 1024) for u in range(2)]
    for t in LDS_TILES:
        for k in range(7):
            mm = 7 * t + k - 3
            aux[mm] = aux[mm] + uread(t, k)
    zl = []
    for hh in range(4):
        for mt in range(2):
            zl.append(("s_add_u32 %s, %s, %d" % (s(S_TMP), s(S_ZX), hh * 28 * 1024),
                       "buffer_load_dwordx4 %s, %s, %s, %s offen offset:%d" % (v(vZx + 8 * hh + 4 * mt, 4), v(vZo), SRD, s(S_TMP), mt * 1024)))
    for i, (x, y) in enumerate(zl):
        if 'nozx' in EXP: continue
        pos = 2 + 6 * i if 'zxearly' not in EXP else i
        aux[pos] = aux[pos] + [x, y]
    marks = {}
    m = 0
    for t in range(8):
        for k in range(7):
            if t == 0:
                asm("s_waitcnt lgkmcnt(%d)" % (6 - k))
            if t in LDS_TILES:
                younger = min(2, 6 - k) * 2
                asm("s_waitcnt lgkmcnt(%d)" % younger)
                B = v(ubuf(k), 8)
            else:
                B = U(t, k)
            smf(asm, acc(t), vA + 4 * k, B, vIdx)
            marks[m] = asm.mark()
            for o in aux[m]:
                if o.startswith("v_permlane32_swap"):
                    prod = (m // 7) * 7 - 1
                    asm.gap(marks[prod], 8)
                asm(o)
            m += 1
    asm.gap(marks[55], 8)
    for o in pair_ops(6, 7, vWf + 6): asm(o)
    pstamp(asm, 2)
    asm("s_cmp_ge_u32 %s, %d" % (s(S_STEP), NSTEP))
    asm("s_cbranch_scc1 L_V_end")
    for i in range(0, 8, 2): asm("v_mov_b64 %s, 0" % v(vAcc + i, 2))
    for i in range(8, 16, 2): asm("v_mov_b64 %s, 0" % v(vAcc + i, 2))
    loads = ["buffer_load_dwordx4 %s, %s, %s, %s offen offset:%d sc1" % (v(vP + 4 * c, 4), v(vPo), SRD, s(S_PB), c * 1024) for c in range(2)]
    loads.append("buffer_load_dwordx4 %s, %s, %s, %s offen sc1" % (v(vP + 8, 4), v(vPo2), SRD, s(S_PB)))
    poll(asm, loads, range(vP, vP + 12), vT, 3, DEPTH_P)
    pstamp(asm, 3)
    for c in range(2):
        for par in range(2):
            for mt in range(2):
                mfma(asm, vAcc + 8 * par + 4 * mt, v(vZx + 8 * (2 * c + par) + 4 * mt, 4), v(vP + 4 * c, 4))
    for mt in range(2):
        mfma(asm, vAcc + 4 * mt, v(vWf + 4 * mt, 4), v(vP + 8, 4))
    mk = asm.mark()
    asm.gap(mk, 8)
    for i in range(8):
        asm("v_add_f32_dpp %s, %s, %s row_ror:8 row_mask:0xf bank_mask:0xf" % (v(vAcc + i), v(vAcc + 8 + i), v(vAcc + i)))
    asm("s_mov_b64 exec, %s" % s(S_N8, 2))
    asm("ds_write_b128 %s, %s" % (v(vRw), v(vAcc, 4)))
    asm("ds_write_b128 %s, %s offset:1024" % (v(vRw), v(vAcc + 4, 4)))
    asm("s_mov_b64 exec, -1")
    asm("s_waitcnt lgkmcnt(0)")
    pstamp(asm, 4)
    asm("s_barrier")
    pstamp(asm, 5)
    if PROF: asm("s_waitcnt lgkmcnt(0)")
    lw = asm.newlabel("vnotw0")
    asm("s_cmp_lg_u32 %s, 0" % s(S_W))
    asm("s_cbranch_scc1 %s" % lw)
    for wv in range(4):
        asm("ds_read_b128 %s, %s offset:%d" % (v(vAcc + 4 * wv, 4), v(vRr), wv * 2048))
    asm("s_waitcnt lgkmcnt(2)")
    asm("v_pk_add_f32 %s, %s, %s" % (v(vAcc, 2), v(vAcc, 2), v(vAcc + 4, 2)))
    asm("v_pk_add_f32 %s, %s, %s" % (v(vAcc + 2, 2), v(vAcc + 2, 2), v(vAcc + 6, 2)))
    asm("s_waitcnt lgkmcnt(0)")
    asm("v_pk_add_f32 %s, %s, %s" % (v(vAcc + 8, 2), v(vAcc + 8, 2), v(vAcc + 12, 2)))
    asm("v_pk_add_f32 %s, %s, %s" % (v(vAcc + 10, 2), v(vAcc + 10, 2), v(vAcc + 14, 2)))
    asm("v_pk_add_f32 %s, %s, %s" % (v(vAcc, 2), v(vAcc, 2), v(vAcc + 8, 2)))
    asm("v_pk_add_f32 %s, %s, %s" % (v(vAcc + 2, 2), v(vAcc + 2, 2), v(vAcc + 10, 2)))
    asm("v_cvt_pk_bf16_f32 %s, %s, %s" % (v(vMs), v(vAcc), v(vAcc + 1)))
    asm("v_cvt_pk_bf16_f32 %s, %s, %s" % (v(vMs + 1), v(vAcc + 2), v(vAcc + 3)))
    asm("s_add_u32 %s, %s, 7168" % (s(S_TMP), s(S_MB)))
    asm("buffer_store_dwordx2 %s, %s, %s, %s offen" % (v(vMs, 2), v(vMo), SRD, s(S_TMP)))
    asm.label(lw)
    asm("s_barrier")
    pstamp(asm, 6)
    pacc(asm, 6)
    global TRV
    TRV = vT
    ptrace(asm, 16)
    asm("s_add_u32 %s, %s, 7168" % (s(S_MB), s(S_MB)))
    asm("s_add_u32 %s, %s, 7168" % (s(S_MX), s(S_MX)))
    asm("s_add_u32 %s, %s, 10240" % (s(S_PB), s(S_PB)))
    asm("s_add_u32 %s, %s, 1" % (s(S_STEP), s(S_STEP)))
    asm("s_add_u32 %s, %s, %d" % (s(S_WX), s(S_WX), 14 * 8 * 1024))
    asm("s_cmp_lt_u32 %s, 64" % s(S_STEP))
    asm("s_cselect_b32 %s, %d, 0" % (s(S_TMP), 16 * 28 * 1024))
    asm("s_add_u32 %s, %s, %s" % (s(S_ZX), s(S_ZX), s(S_TMP)))
    asm("s_branch L_V_loop")
    asm.label("L_V_end")
    for ft in range(2):
        asm("buffer_store_dwordx4 %s, %s, %s, %s offen offset:%d sc1" % (v(vWf + 4 * ft, 4), v(vWo), SRD, s(S_WX), ft * 1024))
    if timing:
        asm("s_memtime %s" % s(S_T1, 2))
        emit_time_out(asm, 1)
        pout(asm, 28, 7)
    asm("s_branch L_done")
    return R

def emit_R_kernel(asm, name, timing=True):
    asm(".p2align 8")
    asm(".type %s,@function" % name)
    asm.label(name)
    asm("s_cmp_ge_u32 s2, 256")
    asm("s_cbranch_scc1 L_done")
    asm("s_load_dwordx2 %s, s[0:1], 128" % s(S_SRD, 2))
    asm("s_load_dwordx2 %s, s[0:1], 120" % s(S_DBG, 2))
    asm("s_load_dwordx2 %s, s[0:1], 8" % s(S_MEM0, 2))
    asm("s_getreg_b32 %s, hwreg(HW_REG_XCC_ID, 0, 4)" % s(S_TMP2))
    asm("v_lshrrev_b32 v1, 6, v0")
    asm("s_nop 0")
    asm("v_readfirstlane_b32 %s, v1" % s(S_W))
    asm("s_waitcnt lgkmcnt(0)")
    asm("s_and_b32 %s, %s, 0xffff" % (s(S_SRD + 1), s(S_SRD + 1)))
    asm("s_mov_b32 %s, 0x10000000" % s(S_SRD + 2))
    asm("s_mov_b32 %s, 0x20000" % s(S_SRD + 3))
    asm("v_lshlrev_b32 v2, 4, v0")
    for i in range(4): asm("v_mov_b32 v%d, 0" % (4 + i))
    for i in range(40):
        if i and i % 15 == 0:
            asm("v_add_u32 v2, %d, v2" % (15 * 4096))
        asm("ds_write_b128 v2, v[4:7] offset:%d" % ((i % 15) * 4096))
        if i % 8 == 7: asm("s_waitcnt lgkmcnt(0)")
    asm("s_waitcnt lgkmcnt(0)")
    asm("s_barrier")
    lt = asm.newlabel("notk")
    asm("s_cmp_lg_u32 %s, 0" % s(S_W))
    asm("s_cbranch_scc1 %s" % lt)
    asm("v_mov_b32 v2, %s" % s(S_TMP2))
    asm("v_lshlrev_b32 v2, 2, v2")
    asm("v_mov_b32 v3, 1")
    asm("s_mov_b64 exec, 1")
    asm("global_atomic_add v4, v2, v3, %s sc0" % s(S_DBG, 2))
    asm("s_waitcnt vmcnt(0)")
    asm("v_mov_b32 v2, %d" % (163840 - 16))
    asm("ds_write_b32 v2, v4")
    asm("s_waitcnt lgkmcnt(0)")
    asm("s_mov_b64 exec, -1")
    asm.label(lt)
    asm("s_barrier")
    asm("v_mov_b32 v2, %d" % (163840 - 16))
    asm("ds_read_b32 v4, v2")
    asm("s_waitcnt lgkmcnt(0)")
    asm("v_readfirstlane_b32 %s, v4" % s(S_ID))
    asm("s_nop 3")
    asm("s_cmp_lg_u32 %s, 0" % s(S_TMP2))
    asm("s_cbranch_scc1 L_done")
    asm("s_cmp_ge_u32 %s, 30" % s(S_ID))
    asm("s_cbranch_scc1 L_done")
    asm("s_cmp_ge_u32 %s, 16" % s(S_ID))
    asm("s_cbranch_scc1 L_V_role")
    RS = emit_S(asm, timing=timing)
    asm.label("L_V_role")
    asm("s_sub_u32 %s, %s, 16" % (s(S_ID), s(S_ID)))
    RV = emit_V(asm, timing=timing)
    asm.label("L_abort")
    asm("s_mov_b64 exec, -1")
    asm("v_mov_b32 v2, 0xdead")
    asm("v_mov_b32 v3, 60")
    asm("global_store_dword v3, v2, %s" % s(S_DBG, 2))
    asm.label("L_done")
    asm("s_endpgm")
    print("S regs", RS.p, "V regs", RV.p)

from gen_r import kernel_desc
if __name__ == "__main__":
    import sys
    PROF = int(sys.argv[1]) if len(sys.argv) > 1 else 0
    NAME = "adaLN_cond__memory_aug_recurrent_mem_tr__moe_arch_mod__prompt_kernel"
    asm = Asm()
    emit_R_kernel(asm, NAME)
    out = "; @launch grid=(256,1,1) block=(256,1,1) lds=163840\n"
    out += '.amdgcn_target "amdgcn-amd-amdhsa--gfx950"\n.text\n.globl %s\n' % NAME
    out += asm.text()
    out += '.section .rodata,"a"\n' + kernel_desc(NAME)
    open("r_only.s", "w").write(out)
    print("written", len(out))
```

```python
from asmlib import *
import layout as L
from gen_pre import srd, WS, A_WQ, A_WK, A_WV, A_WO

BUF = [0, 57344]
sH, sTile, sW, sSeg = 24, 25, 26, 27
sWa, sWb = 8, 12
sT0, sT1, sT2, sM0 = 16, 17, 18, 19
sOut = 28
vLane, vA1, vB2, vD1, vD2, vD3, vO1 = 1, 2, 3, 4, 5, 6, 7
vT = 8
vA1b, vB2b, vL16, vL16b = 12, 13, 14, 15
vAcc = 16
vFr = 48
vPk = 72
vF1 = 96
vF2 = 160
aB1 = 0

def mfma32(asm, d, A, B, first=False):
    asm("v_mfma_f32_32x32x16_bf16 %s, %s, %s, %s" % (v(d, 16), A, B, "0" if first else v(d, 16)))

def setup(asm):
    asm("v_and_b32 %s, 63, v0" % v(vLane))
    asm("v_lshrrev_b32 %s, 6, v0" % v(vT))
    asm("s_nop 0")
    asm("v_readfirstlane_b32 %s, %s" % (s(sW), v(vT)))
    l = vLane
    asm("v_lshrrev_b32 %s, 5, %s" % (v(vT), v(l)))
    asm("v_lshlrev_b32 %s, 8, %s" % (v(vA1), v(vT)))
    asm("v_bfe_u32 %s, %s, 2, 2" % (v(vT + 1), v(l)))
    asm("v_lshl_add_u32 %s, %s, 6, %s" % (v(vA1), v(vT + 1), v(vA1)))
    asm("v_bfe_u32 %s, %s, 4, 1" % (v(vT + 2), v(l)))
    asm("v_lshl_add_u32 %s, %s, 5, %s" % (v(vA1), v(vT + 2), v(vA1)))
    asm("v_and_b32 %s, 1, %s" % (v(vT + 3), v(l)))
    asm("v_lshl_add_u32 %s, %s, 4, %s" % (v(vA1), v(vT + 3), v(vA1)))
    asm("v_bfe_u32 %s, %s, 1, 1" % (v(vT + 3), v(l)))
    asm("v_lshl_add_u32 %s, %s, 3, %s" % (v(vA1), v(vT + 3), v(vA1)))
    asm("v_lshlrev_b32 %s, 10, %s" % (v(vB2), v(vT)))
    asm("v_lshl_add_u32 %s, %s, 6, %s" % (v(vB2), v(vT + 1), v(vB2)))
    asm("v_lshl_add_u32 %s, %s, 5, %s" % (v(vB2), v(vT + 2), v(vB2)))
    asm("v_and_b32 %s, 3, %s" % (v(vT + 3), v(l)))
    asm("v_lshl_add_u32 %s, %s, 3, %s" % (v(vB2), v(vT + 3), v(vB2)))
    asm("v_bfe_u32 %s, %s, 2, 3" % (v(vT + 1), v(l)))
    asm("v_lshlrev_b32 %s, 13, %s" % (v(vD1), v(vT + 1)))
    asm("v_lshl_add_u32 %s, %s, 6, %s" % (v(vD1), v(vT), v(vD1)))
    asm("v_lshl_add_u32 %s, %s, 4, %s" % (v(vD1), v(vT + 3), v(vD1)))
    asm("v_mul_u32_u24 %s, 896, %s" % (v(vD2), v(vT + 1)))
    asm("v_lshl_add_u32 %s, %s, 6, %s" % (v(vD2), v(vT), v(vD2)))
    asm("v_lshl_add_u32 %s, %s, 4, %s" % (v(vD2), v(vT + 3), v(vD2)))
    asm("v_and_b32 %s, 31, %s" % (v(vT + 1), v(l)))
    asm("v_lshlrev_b32 %s, 13, %s" % (v(vD3), v(vT + 1)))
    asm("v_lshl_add_u32 %s, %s, 4, %s" % (v(vD3), v(vT), v(vD3)))
    asm("v_lshlrev_b32 %s, 10, %s" % (v(vO1), v(vT + 2)))
    asm("v_lshl_add_u32 %s, %s, 8, %s" % (v(vO1), v(vT), v(vO1)))
    asm("v_and_b32 %s, 15, %s" % (v(vT + 1), v(l)))
    asm("v_lshl_add_u32 %s, %s, 4, %s" % (v(vO1), v(vT + 1), v(vO1)))
    asm("v_add_u32 %s, %d, %s" % (v(vA1b), BUF[1], v(vA1)))
    asm("v_add_u32 %s, %d, %s" % (v(vB2b), BUF[1], v(vB2)))
    asm("v_lshlrev_b32 %s, 4, %s" % (v(vL16), v(l)))
    asm("v_add_u32 %s, %d, %s" % (v(vL16b), BUF[1], v(vL16)))

def load_h(asm):
    asm("s_mul_i32 %s, %s, 28672" % (s(sT0), s(sSeg)))
    asm("s_add_u32 %s, %s, %d" % (s(sT0), s(sT0), L.HF))
    for k in range(28):
        asm("buffer_load_dwordx4 %s, %s, %s, %s offen offset:%d sc1" % (a(aB1 + 4 * k, 4), v(vL16), WS, s(sT0), (k % 4) * 1024))
        if k % 4 == 3: asm("s_add_u32 %s, %s, 4096" % (s(sT0), s(sT0)))

def dma_ops(kind, idx, buf, srdreg):
    ops = []
    if kind == 1:
        for p in range(14):
            ops.append(("s", "s_add_u32 %s, %s, %d" % (s(sT1), s(sM0), BUF[buf] + p * 1024)))
            ops.append(("s", "s_mov_b32 m0, %s" % s(sT1)))
            ops.append(("s", "s_add_u32 %s, %s, %d" % (s(sT2), s(sOut + 1), p * 8 * 8192 + idx * 128)))
            ops.append(("v", "buffer_load_dwordx4 %s, %s, %s offen lds" % (v(vD1), s(srdreg, 4), s(sT2))))
    elif kind == 2:
        for p in range(8):
            ops.append(("s", "s_add_u32 %s, %s, %d" % (s(sT1), s(sM0 + 10), BUF[buf] + p * 1024)))
            ops.append(("s", "s_mov_b32 m0, %s" % s(sT1)))
            ops.append(("s", "s_add_u32 %s, %s, %d" % (s(sT2), s(sOut + 2), p * 8 * 896 + idx * 128)))
            ops.append(("v", "buffer_load_dwordx4 %s, %s, %s offen lds" % (v(vD2), s(srdreg, 4), s(sT2))))
    else:
        for p in range(8):
            q, dt = p // 2, p % 2
            ops.append(("s", "s_add_u32 %s, %s, %d" % (s(sT1), s(sM0 + 10), BUF[buf] + p * 1024)))
            ops.append(("s", "s_mov_b32 m0, %s" % s(sT1)))
            ops.append(("s", "s_add_u32 %s, %s, %d" % (s(sT2), s(sOut + 3), (64 * idx + 32 * dt) * 8192 + q * 32)))
            ops.append(("v", "buffer_load_dwordx4 %s, %s, %s offen lds" % (v(vD3), s(srdreg, 4), s(sT2))))
    return ops

def scalar_bases(asm):
    asm("s_mul_i32 %s, %s, %d" % (s(sM0), s(sW), 14 * 1024))
    asm("s_lshl_b32 %s, %s, 13" % (s(sM0 + 10), s(sW)))
    asm("s_lshl_b32 %s, %s, 9" % (s(sT0), s(sH)))
    asm("s_mul_i32 %s, %s, %d" % (s(sOut + 1), s(sW), 14 * 8 * 8192))
    asm("s_add_u32 %s, %s, %s" % (s(sOut + 1), s(sOut + 1), s(sT0)))
    asm("s_mul_i32 %s, %s, %d" % (s(sOut + 2), s(sH), 256 * 896))
    asm("s_mul_i32 %s, %s, %d" % (s(sT1), s(sW), 64 * 896))
    asm("s_add_u32 %s, %s, %s" % (s(sOut + 2), s(sOut + 2), s(sT1)))
    asm("s_lshl_b32 %s, %s, 7" % (s(sOut + 3), s(sW)))
    asm("s_add_u32 %s, %s, %s" % (s(sOut + 3), s(sOut + 3), s(sT0)))
sOut = 30

def run_slab(asm, nk, reads, mm, next_dma, pending=0):
    asm("s_waitcnt vmcnt(%d)" % pending)
    asm("s_barrier")
    groups = [next_dma[i:i + 4] for i in range(0, len(next_dma), 4)]
    nread = len(reads(0, 0))
    for k in range(min(2, nk)):
        for o in reads(k, k % 3): asm(o)
    gi = 0
    per = max(1, nk // max(1, len(groups)))
    for k in range(nk):
        if k + 2 < nk:
            for o in reads(k + 2, (k + 2) % 3): asm(o)
        ahead = min(2, nk - 1 - k)
        asm("s_waitcnt lgkmcnt(%d)" % (ahead * nread))
        mm(k, k % 3)
        if gi < len(groups) and k % per == 0:
            for _, o in groups[gi]: asm(o)
            gi += 1
    while gi < len(groups):
        for _, o in groups[gi]: asm(o)
        gi += 1

def pack_acc(asm, acc, dst):
    for i in range(8):
        asm("v_cvt_pk_bf16_f32 %s, %s, %s" % (v(dst + i), v(acc + 2 * i), v(acc + 2 * i + 1)))

def stage1(asm, srdreg, dstF, first_done, after):
    b = first_done
    for sl in range(4):
        nxt = dma_ops(1, sl + 1, 1 - b, srdreg) if sl < 3 else after(1 - b)
        ar = vA1b if b else vA1
        def reads(k, fr, ar=ar):
            return ["ds_read_b64_tr_b16 %s, %s offset:%d" % (v(vFr + 8 * fr + 4 * et + 2 * rd, 2), v(ar), k * 2048 + rd * 1024 + et * 512) for et in range(2) for rd in range(2)]
        def mm(k, fr):
            for et in range(2):
                mfma32(asm, vAcc + 16 * et, v(vFr + 8 * fr + 4 * et, 4), a(aB1 + 4 * k, 4), first=(k == 0))
        run_slab(asm, 28, reads, mm, nxt)
        asm("s_nop 11")
        for et in range(2):
            pack_acc(asm, vAcc + 16 * et, dstF + 16 * sl + 8 * et)
        b = 1 - b
    return b

def big_offset_fix(asm):
    pass

def emit_ztask(asm):
    setup(asm)
    asm("s_lshl_b32 %s, %s, 2" % (s(sSeg), s(sTile)))
    asm("s_add_u32 %s, %s, %s" % (s(sSeg), s(sSeg), s(sW)))
    srd(asm, sWa, A_WV, 448 * 8192)
    srd(asm, sWb, A_WO, 4096 * 896)
    scalar_bases(asm)
    asm("s_barrier")
    for _, o in dma_ops(1, 0, 0, sWa): asm(o)
    load_h(asm)
    b = stage1(asm, sWa, vF1, 0, lambda buf: dma_ops(2, 0, buf, sWb))
    asm("s_lshl_b32 %s, %s, 4" % (s(sOut), s(sSeg)))
    asm("s_add_u32 %s, %s, %s" % (s(sOut), s(sOut), s(sH)))
    asm("s_mul_i32 %s, %s, %d" % (s(sOut), s(sOut), 28 * 1024))
    asm("s_add_u32 %s, %s, %d" % (s(sOut), s(sOut), L.ZX))
    for sl in range(7):
        nxt = dma_ops(2, sl + 1, 1 - b, sWb) if sl < 6 else []
        ar = vB2b if b else vB2
        def reads(k, fr, ar=ar):
            return ["ds_read_b64_tr_b16 %s, %s offset:%d" % (v(vFr + 8 * fr + 4 * ft + 2 * rd, 2), v(ar), k * 2048 + ft * 512 + rd * 256) for ft in range(2) for rd in range(2)]
        def mm(k, fr):
            for ft in range(2):
                mfma32(asm, vAcc + 16 * ft, v(vF1 + 4 * k, 4), v(vFr + 8 * fr + 4 * ft, 4), first=(k == 0))
        run_slab(asm, 16, reads, mm, nxt, pending=(4 if sl > 0 else 0))
        asm("s_nop 11")
        for ft in range(2):
            pack_acc(asm, vAcc + 16 * ft, vPk + 8 * ft)
        for ft in range(2):
            for qq in range(2):
                asm("buffer_store_dwordx4 %s, %s, %s, %s offen offset:%d sc1" % (v(vPk + 8 * ft + 4 * qq, 4), v(vO1), WS, s(sOut), ft * 2048 + qq * 512))
        asm("s_add_u32 %s, %s, 4096" % (s(sOut), s(sOut)))
        b = 1 - b

def emit_stask(asm):
    setup(asm)
    asm("s_lshl_b32 %s, %s, 2" % (s(sSeg), s(sTile)))
    asm("s_add_u32 %s, %s, %s" % (s(sSeg), s(sSeg), s(sW)))
    srd(asm, sWa, A_WQ, 448 * 8192)
    srd(asm, sWb, A_WK, 448 * 8192)
    scalar_bases(asm)
    asm("s_barrier")
    for _, o in dma_ops(1, 0, 0, sWa): asm(o)
    load_h(asm)
    b = stage1(asm, sWa, vF1, 0, lambda buf: dma_ops(1, 0, buf, sWb))
    b = stage1(asm, sWb, vF2, b, lambda buf: dma_ops(3, 0, buf, sWb))
    for q in range(16):
        mfma32(asm, vAcc, v(vF2 + 4 * q, 4), v(vF1 + 4 * q, 4), first=(q == 0))
    asm("s_nop 11")
    pack_acc(asm, vAcc, vPk)
    asm("s_lshl_b32 %s, %s, 4" % (s(sOut), s(sSeg)))
    asm("s_add_u32 %s, %s, %s" % (s(sOut), s(sOut), s(sH)))
    asm("s_lshl_b32 %s, %s, 11" % (s(sT0), s(sOut)))
    asm("s_add_u32 %s, %s, %d" % (s(sT0), s(sT0), L.SX))
    for p in range(2):
        asm("buffer_store_dwordx4 %s, %s, %s, %s offen offset:%d sc1" % (v(vPk + 4 * p, 4), v(vL16), WS, s(sT0), p * 1024))
    asm("s_mul_i32 %s, %s, %d" % (s(sOut), s(sOut), 28 * 1024))
    asm("s_add_u32 %s, %s, %d" % (s(sOut), s(sOut), L.QF))
    for sl in range(7):
        nxt = dma_ops(3, sl + 1, 1 - b, sWb) if sl < 6 else []
        ar = vL16b if b else vL16
        def reads(k, fr, ar=ar):
            return ["ds_read_b128 %s, %s offset:%d" % (v(vFr + 8 * fr + 4 * dt, 4), v(ar), (2 * k + dt) * 1024) for dt in range(2)]
        def mm(k, fr):
            for dt in range(2):
                mfma32(asm, vAcc + 16 * dt, v(vFr + 8 * fr + 4 * dt, 4), v(vF1 + 4 * k, 4), first=(k == 0))
        run_slab(asm, 16, reads, mm, nxt, pending=(4 if sl > 0 else 2))
        asm("s_nop 11")
        for dt in range(2):
            pack_acc(asm, vAcc + 16 * dt, vPk + 8 * dt)
        for dt in range(2):
            for qq in range(2):
                asm("buffer_store_dwordx4 %s, %s, %s, %s offen offset:%d sc1" % (v(vPk + 8 * dt + 4 * qq, 4), v(vL16), WS, s(sOut), (2 * dt + qq) * 1024))
        asm("s_add_u32 %s, %s, 4096" % (s(sOut), s(sOut)))
        b = 1 - b
```

```python
KB = 1024
def align(x, a): return (x + a - 1) // a * a
off = 0
def alloc(n, al=4096):
    global off
    off = align(off, al)
    o = off
    off += n
    return o
NSEG = 64
GF  = alloc(16*4*49*2048)
UF  = alloc(14*4*56*2048)
HF  = alloc(NSEG*28672 + 4096)
ZX  = alloc(NSEG*16*28*1024)
MB  = alloc((NSEG+1)*7168)
PB  = alloc(NSEG*10240)
WX  = alloc(NSEG*14*4*2*1024)
MX  = alloc((NSEG+1)*7168)
QF  = alloc(NSEG*16*28*1024)
SX  = alloc(NSEG*16*2048)
PX  = alloc(NSEG*16*2560)
MOD = alloc(6*448*4)
RB  = alloc(2048*4)
H2  = alloc(2048*896)
X1  = alloc(2048*896)
YP  = alloc(64*2*448*4)
END = off
if __name__ == "__main__":
    for k in "GF UF HF ZX MB PB WX MX QF SX PX MOD RB H2 X1 YP END".split():
        print(k, hex(globals()[k]), globals()[k])
```

```python
import sys
from asmlib import *
from gen_pre import *
import gen_x1 as X
import gen_eo as E
import gen_r2 as R
from gen_r import kernel_desc
import layout as L
asm = Asm()
def poison(asm):
    n = (65 * 7168 + 4095) // 4096 * 4096
kernel_head(asm, "k_mod_kernel", 256)
lp = asm.newlabel("pois")
asm("s_cmp_ge_u32 s2, 42"); asm("s_cbranch_scc1 %s" % lp)
asm("s_mov_b32 s3, s2"); emit_mod(asm, 3)
asm("s_branch k_mod_kernel_end")
asm.label(lp)
tot = L.PB + 64 * 10240 - L.MB
asm("s_sub_u32 s3, s2, 42")
asm("s_lshl_b32 s3, s3, 12")
asm("v_lshlrev_b32 v1, 4, v0")
for i in range(4): asm("v_mov_b32 v%d, -1" % (4 + i))
npass = (tot + 214 * 4096 - 1) // (214 * 4096)
for p in range(npass):
    l2 = asm.newlabel("pz")
    asm("s_cmp_ge_u32 s3, %d" % tot); asm("s_cbranch_scc1 %s" % l2)
    asm("s_add_u32 s8, s3, %d" % L.MB)
    asm("buffer_store_dwordx4 v[4:7], v1, %s, s8 offen" % WS)
    asm.label(l2)
    asm("s_add_u32 s3, s3, %d" % (214 * 4096))
kernel_tail(asm, "k_mod_kernel")
kernel_head(asm, "k_ln_kernel", 256); asm("s_mov_b32 s3, s2"); emit_ln1(asm, 3); kernel_tail(asm, "k_ln_kernel")
kernel_head(asm, "k_gu_kernel", 256); asm("s_mov_b32 s3, s2"); emit_gu(asm, 3); kernel_tail(asm, "k_gu_kernel")
kernel_head(asm, "k_z_kernel", 256)
asm("s_and_b32 s%d, s2, 15" % X.sH); asm("s_lshr_b32 s%d, s2, 4" % X.sTile)
X.emit_ztask(asm); kernel_tail(asm, "k_z_kernel")
kernel_head(asm, "k_s_kernel", 256)
asm("s_and_b32 s%d, s2, 15" % X.sH); asm("s_lshr_b32 s%d, s2, 4" % X.sTile)
X.emit_stask(asm); kernel_tail(asm, "k_s_kernel")
R.emit_R_kernel(asm, "k_r_kernel", timing=False)
kernel_head(asm, "k_e_kernel", 256)
asm("v_lshrrev_b32 v1, 6, v0"); asm("s_nop 0"); asm("v_readfirstlane_b32 s3, v1")
asm("s_lshr_b32 s24, s2, 2")
asm("s_and_b32 s25, s2, 3"); asm("s_lshl_b32 s25, s25, 2"); asm("s_add_u32 s25, s25, s3")
E.emit_etask(asm, 24, 25); kernel_tail(asm, "k_e_kernel")
kernel_head(asm, "k_o_kernel", 64); asm("s_mov_b32 s3, s2"); E.emit_otask(asm, 3); kernel_tail(asm, "k_o_kernel")
kernel_head(asm, "k_m1_kernel", 56); asm("s_mov_b32 s3, s2"); E.emit_moe1(asm, 3); kernel_tail(asm, "k_m1_kernel")
kernel_head(asm, "k_m2_kernel", 2); asm("s_mov_b32 s3, s2"); E.emit_moe2(asm, 3); kernel_tail(asm, "k_m2_kernel")
ks = [("k_mod_kernel", 256, 8192, 128, 128), ("k_ln_kernel", 256, 0, 128, 128), ("k_gu_kernel", 256, 65536, 512, 256),
      ("k_z_kernel", 256, 114688, 512, 256), ("k_s_kernel", 256, 114688, 512, 256), ("k_r_kernel", 256, 163840, 512, 256),
      ("k_e_kernel", 256, 0, 512, 256), ("k_o_kernel", 64, 102400, 512, 256), ("k_m1_kernel", 56, 20480, 256, 256), ("k_m2_kernel", 2, 1024, 256, 256)]
hdr = open("adaLN_cond__memory_aug_recurrent_mem_tr__moe_arch_mod__prompt.s.ref").read().split("\n")
top = [l for l in hdr if l.startswith(";") and "@launch" not in l and "Override launch" not in l and "grid=ceil" not in l]
out = "\n".join(top) + "\n"
for n, g, lds, vg, ac in ks:
    out += "; @launch kernel=%s grid=(%d,1,1) block=(256,1,1) lds=%d\n" % (n, g, lds)
out += '.amdgcn_target "amdgcn-amd-amdhsa--gfx950"\n.text\n'
out += asm.text()
out += '.section .rodata,"a"\n' + "".join(kernel_desc(n, vg, ac) for n, g, lds, vg, ac in ks)
open(sys.argv[1] if len(sys.argv) > 1 else "all.s", "w").write(out)
print(len(out))
```
